```python
import torch

def _softmax(x, axis=-1):
    return torch.softmax(x, dim=axis)
def _gelu(x):
    return torch.nn.functional.gelu(x, approximate="tanh")
def _silu(x):
    return torch.nn.functional.silu(x)
def _sigmoid(x):
    return torch.sigmoid(x)
def _layernorm(x, axis=-1, eps=1e-5):
    m = x.mean(dim=axis, keepdim=True)
    v = x.var(dim=axis, keepdim=True, unbiased=False)
    return (x - m) / torch.sqrt(v + eps)
def _scatter_add(tgt, idx, src, axis=0):
    return tgt.clone().index_add_(axis, idx, src)
def _segment_sum(src, seg, n):
    out = torch.zeros((n,) + src.shape[1:], dtype=src.dtype)
    return out.index_add_(0, seg, src)
def _pad(x, pw):
    flat = tuple(v for pair in reversed(pw) for v in pair)
    return torch.nn.functional.pad(x, flat)

kernel_name = 'gated_mix__mha_block__ssm_conv_h3__prompt'

def setup_inputs():

    _w = (lambda a: (lambda t: t.to(torch.bfloat16) if t.is_floating_point() else t)(torch.as_tensor(a)))
    def _A_setup():
        B, S, D, H = 1, 2048, 576, 32
        return {
            "x": _w((lambda *s: torch.randn(*s, dtype=torch.bfloat16) * 0.05)(B, S, D)),
            "wqkv": _w((lambda *s: torch.randn(*s, dtype=torch.bfloat16) * 0.8)(D, 3 * D)),
            "wo": _w((lambda *s: torch.randn(*s, dtype=torch.bfloat16) * 0.05)(D, D)),
        }
    _A_in = _A_setup()

    def _B_setup():
        B, S, D = 1, 2048, 576
        ks = 4
        return {
            "q": _w((lambda *s: torch.randn(*s, dtype=torch.bfloat16) * 0.05)(B, S, D)),
            "k": _w((lambda *s: torch.randn(*s, dtype=torch.bfloat16) * 0.4)(B, S, D)),
            "v": _w((lambda *s: torch.randn(*s, dtype=torch.bfloat16) * 0.4)(B, S, D)),
            "shift_k": _w((lambda *s: torch.randn(*s, dtype=torch.bfloat16) * 0.4)(D, ks) * 0.5),
            "ssm_k": _w((lambda *s: torch.randn(*s, dtype=torch.bfloat16) * 1.6)(D, S) * (1.0 / S ** 0.5)),
            "ssm_D": _w((lambda *s: torch.randn(*s, dtype=torch.bfloat16) * 0.4)(D)),
        }
    _B_in = _B_setup()

    return {
        "A_x": _A_in["x"],
        "A_wqkv": _A_in["wqkv"],
        "A_wo": _A_in["wo"],
        "B_q": _B_in["q"],
        "B_k": _B_in["k"],
        "B_v": _B_in["v"],
        "B_shift_k": _B_in["shift_k"],
        "B_ssm_k": _B_in["ssm_k"],
        "B_ssm_D": _B_in["ssm_D"],
        "gate_w": _w((lambda *s: torch.randn(*s, dtype=torch.bfloat16) * 0.05)(576) * 16.0),
    }

def reference(A_x, A_wqkv, A_wo, B_q, B_k, B_v, B_shift_k, B_ssm_k, B_ssm_D, gate_w):
    def _A_ref(x, wqkv, wo):
        B, S, D = x.shape
        H = 32
        Dh = D // H
        qkv = (lambda x, *d: x.permute(*d))((x @ wqkv).reshape(B, S, 3, H, Dh), 2, 0, 3, 1, 4)
        q, k, v = qkv[0], qkv[1], qkv[2]
        scores = torch.einsum("bhqd,bhkd->bhqk", q, k) * (Dh ** -0.5)
        p = _softmax(scores, axis=-1)
        o = torch.einsum("bhqk,bhkd->bhqd", p, v)
        return (lambda x, *d: x.permute(*d))(o, 0, 2, 1, 3).reshape(B, S, D) @ wo

    def _B_ref(q, k, v, shift_k, ssm_k, ssm_D):
        B, S, D = q.shape
        ks = shift_k.shape[-1]
        k_pad = _pad(k, ((0, 0), (ks - 1, 0), (0, 0)))
        k_shift = torch.zeros_like(k)
        for t in range(ks):
            k_shift = k_shift + k_pad[:, t:t + S, :] * shift_k[:, ks - 1 - t][None, None, :]
        kv = k_shift * v
        L = 2 * S
        kv_pad = _pad(kv, ((0, 0), (0, S), (0, 0)))
        kf_pad = _pad(ssm_k, ((0, 0), (0, S)))
        kv_f = (lambda x, axes=(-2,-1): torch.fft.rfft2(x.float(), dim=axes))(kv_pad[:, None, :, :], axes=(1, 2))
        kf_f = (lambda x, axes=(-2,-1): torch.fft.rfft2(x.float(), dim=axes))(kf_pad[:, None, :], axes=(1, 2))
        kf_f = (lambda x, *d: x.permute(*d))(kf_f, 1, 2, 0)
        y_f = kv_f * kf_f[None, :, :, :]
        y = (lambda x, s, axes=(-2,-1): torch.fft.irfft2(x, s=s, dim=axes).to(torch.bfloat16))(y_f, (1, L), axes=(1, 2))[:, 0, :S, :]
        y = y + kv * ssm_D[None, None, :]
        return q * y

    x = A_x
    g = _sigmoid((x * gate_w).sum(-1, keepdims=True))
    a = _A_ref(x, A_wqkv, A_wo)
    b = _B_ref(x, B_k, B_v, B_shift_k, B_ssm_k, B_ssm_D)
    return g * a + (1 - g) * b
```

```python
class Asm:
    def __init__(self):
        self.l = []
    def __call__(self, s=''):
        for line in s.split('\n'):
            line = line.strip()
            if not line: continue
            if line.endswith(':') or line.startswith('.'):
                self.l.append(line)
            else:
                self.l.append('    ' + line)
    def text(self):
        return '\n'.join(self.l) + '\n'
def v(n, c=1):
    return f'v{n}' if c == 1 else f'v[{n}:{n+c-1}]'
def s(n, c=1):
    return f's{n}' if c == 1 else f's[{n}:{n+c-1}]'
def kd(name, vgpr, sgpr=96, accum=None):
    accum = accum or ((vgpr + 3)//4*4)
    return f'''.p2align 6
.amdhsa_kernel {name}
  .amdhsa_next_free_vgpr {vgpr}
  .amdhsa_next_free_sgpr {sgpr}
  .amdhsa_accum_offset {accum}
  .amdhsa_group_segment_fixed_size 0
  .amdhsa_kernarg_size 104
  .amdhsa_user_sgpr_count 2
  .amdhsa_user_sgpr_kernarg_segment_ptr 1
  .amdhsa_system_sgpr_workgroup_id_x 1
.end_amdhsa_kernel
'''
HEADER = '''; Kernarg layout for this problem (104 bytes, ptrs only, base s[0:1]):
'''
```

```python
from asmb import *
from layout import *

V_LANE=1; V_T0=2; V_T1=3; V_T2=4; V_T3=5
V_QLO=8
V_QHI=12
V_KLO=16
V_KHI=20
V_IDX=22
V_AK=23; V_AH=24; V_AV=25
V_V0=28
V_V1=36
V_S0=48
V_S1=64
V_ACC=80
NV_ATTN=96

DEBUG=False
THRESH=0x42200000
FLAG_LDS=163584
NODS=False; NOBAR=False; NOWAIT=False; ONEWAVE=False
PRIO=None
def emit_tile(a, j, barrier=None, pre=None):
    cur = V_S0 if j % 2 == 0 else V_S1
    oth = V_S1 if j % 2 == 0 else V_S0
    vcur = V_V0 if j % 2 == 0 else V_V1
    voth = V_V1 if j % 2 == 0 else V_V0
    E = lambda lo, hi: [a(f'v_exp_f32 {v(cur+r)}, {v(cur+r)}') for r in range(lo, hi)]
    if pre: pre(a)
    E(0,4)
    a(f'v_smfmac_f32_32x32x32_bf16 {v(V_ACC,16)}, {v(voth+4,4)}, {v(oth+8,8)}, {v(V_IDX)}')
    E(4,8)
    if not NOWAIT: a(f's_waitcnt lgkmcnt(0)')
    a(f'v_mfma_f32_32x32x16_bf16 {v(oth,16)}, {v(V_KLO,4)}, {v(V_QLO,4)}, 0')
    E(8,12)
    a(f'v_mfma_f32_32x32x8bf16_1k {v(oth,16)}, {v(V_KHI,2)}, {v(V_QHI,2)}, {v(oth,16)}')
    if barrier and not NOBAR: barrier(a)
    if not NODS:
        a(f'ds_read_b128 {v(V_KLO,4)}, {v(V_AK)} offset:{(j+2)*TILE_B+KLO_O}')
        a(f'ds_read_b32 {v(V_KHI)}, {v(V_AH)} offset:{(j+2)*TILE_B}')
        a(f'ds_read_b128 {v(voth,4)}, {v(V_AV)} offset:{(j+1)*TILE_B}')
        a(f'ds_read_b128 {v(voth+4,4)}, {v(V_AV)} offset:{(j+1)*TILE_B+640}')
    E(12,16)
    a(f'v_smfmac_f32_32x32x32_bf16 {v(V_ACC,16)}, {v(vcur,4)}, {v(cur,8)}, {v(V_IDX)}')

def emit_attn_kernel(name, stamp=False):
    a = Asm()
    a(f'.globl {name}\n.p2align 8\n.type {name},@function\n{name}:')
    a('s_cmp_ge_u32 s2, 256')
    a(f's_cbranch_scc1 L_end_{name}')
    a('s_load_dwordx2 s[4:5], s[0:1], 96')
    if stamp:
        a('s_load_dwordx2 s[40:41], s[0:1], 88')
        a('s_memtime s[42:43]')
    a('s_and_b32 s12, s2, 7')
    a('s_lshr_b32 s13, s2, 3')
    a('s_lshr_b32 s14, s13, 3')
    a('s_lshl_b32 s8, s12, 2')
    a('s_add_u32 s8, s8, s14')
    a('s_and_b32 s9, s13, 7')
    a(f'v_lshrrev_b32 {v(V_T0)}, 6, v0')
    a(f'v_and_b32 {v(V_LANE)}, 63, v0')
    a(f'v_readfirstlane_b32 s10, {v(V_T0)}')
    a(f's_mov_b32 s6, {WS_END}')
    a('s_mov_b32 s7, 0x20000')
    a(f'v_lshlrev_b32 {v(V_AK)}, 4, {v(V_LANE)}')
    a('s_lshl_b32 s15, s9, 3')
    a('s_add_u32 s15, s15, s10')
    a('s_lshl_b32 s16, s8, 16')
    a('s_lshl_b32 s17, s15, 10')
    a('s_add_u32 s16, s16, s17')
    a(f's_add_u32 s16, s16, {QLO_OFF}')
    a('s_lshl_b32 s17, s8, 13')
    a('s_lshl_b32 s18, s15, 7')
    a('s_add_u32 s17, s17, s18')
    a(f's_add_u32 s17, s17, {QHI_OFF}')
    a(f'v_and_b32 {v(V_T0)}, 31, {v(V_LANE)}')
    a(f'v_lshlrev_b32 {v(V_AH)}, 2, {v(V_T0)}')
    a(f'v_lshlrev_b32 {v(V_T1)}, 2, {v(V_LANE)}')
    a('s_lshl_b32 s18, s8, 8')
    a(f's_add_u32 s18, s18, {NRM_OFF}')
    a(f's_mul_i32 s20, s8, {KV_HEAD}')
    a('s_lshl_b32 s21, s10, 10')
    a('s_add_u32 s20, s20, s21')
    if KV_OFF: a(f's_add_u32 s20, s20, {KV_OFF}')
    a('s_waitcnt lgkmcnt(0)')
    a(f'buffer_load_dwordx4 {v(V_QLO,4)}, {v(V_AK)}, s[4:7], s16 offen')
    a(f'buffer_load_dword {v(V_QHI)}, {v(V_AH)}, s[4:7], s17 offen')
    a(f'buffer_load_dword {v(V_T1)}, {v(V_T1)}, s[4:7], s18 offen')
    a('s_mov_b32 s22, 19')
    a(f'L_dma_{name}:')
    a('s_mov_b32 m0, s21')
    a('s_add_u32 s21, s21, 8192')
    a(f'buffer_load_dwordx4 {v(V_AK)}, s[4:7], s20 offen lds')
    a('s_add_u32 s20, s20, 8192')
    a('s_sub_u32 s22, s22, 1')
    a('s_cmp_lg_u32 s22, 0')
    a(f's_cbranch_scc1 L_dma_{name}')
    a(f'v_mov_b32 {v(V_IDX)}, 0xdddddddd')
    a(f'v_mov_b32 {v(V_KHI+1)}, 0x3f803f80')
    a(f'v_add_u32 {v(V_AH)}, {KHI_O}, {v(V_AH)}')
    a(f'v_and_b32 {v(V_T0)}, 31, {v(V_LANE)}')
    a(f'v_subrev_u32 {v(V_T3)}, 16, {v(V_T0)}')
    a(f'v_cmp_gt_u32 vcc, 20, {v(V_T0)}')
    a(f'v_lshrrev_b32 {v(V_AV)}, 5, {v(V_LANE)}')
    a(f'v_mul_u32_u24 {v(V_AV)}, 320, {v(V_AV)}')
    a(f'v_cndmask_b32 {v(V_T0)}, {v(V_T3)}, {v(V_T0)}, vcc')
    a(f'v_lshlrev_b32 {v(V_T0)}, 4, {v(V_T0)}')
    a(f'v_add3_u32 {v(V_AV)}, {v(V_AV)}, {v(V_T0)}, 0')
    a(f'v_add_u32 {v(V_AV)}, {V_O}, {v(V_AV)}')
    for r in range(16): a(f'v_mov_b32 {v(V_ACC+r)}, 0')
    for r in range(8): a(f'v_mov_b32 {v(V_S1+8+r)}, 0')
    for r in range(4): a(f'v_mov_b32 {v(V_V1+4+r)}, 0')
    a('s_waitcnt vmcnt(19)')
    a(f'v_cmp_gt_u32 vcc, 32, {v(V_LANE)}')
    for sh in (8,4,2,1):
        a(f's_nop 1')
        a(f'v_max_f32_dpp {v(V_T1)}, {v(V_T1)}, {v(V_T1)} row_ror:{sh} row_mask:0xf bank_mask:0xf')
    a(f'v_cndmask_b32 {v(V_QHI)}, 0, {v(V_QHI)}, vcc')
    a(f'v_mov_b32 {v(V_T2)}, 0')
    a(f'v_readlane_b32 s26, {v(V_T1)}, 0')
    a(f'v_readlane_b32 s27, {v(V_T1)}, 16')
    a(f'v_readlane_b32 s28, {v(V_T1)}, 32')
    a(f'v_readlane_b32 s29, {v(V_T1)}, 48')
    for r in range(4): a(f'v_dot2_f32_bf16 {v(V_T2)}, {v(V_QLO+r)}, {v(V_QLO+r)}, {v(V_T2)}')
    a(f'v_dot2_f32_bf16 {v(V_T2)}, {v(V_QHI)}, {v(V_QHI)}, {v(V_T2)}')
    a('s_max_u32 s26, s26, s27')
    a('s_max_u32 s28, s28, s29')
    a('s_max_u32 s26, s26, s28')
    a(f'v_mov_b32 {v(V_T3)}, {v(V_T2)}')
    a('s_nop 1')
    a(f'v_permlane32_swap_b32 {v(V_T2)}, {v(V_T3)}')
    a('s_nop 1')
    a(f'v_add_f32 {v(V_T2)}, {v(V_T2)}, {v(V_T3)}')
    a(f'v_mul_f32 {v(V_T1)}, s26, {v(V_T2)}')
    a(f'v_sqrt_f32 {v(V_T1)}, {v(V_T1)}')
    a(f's_nop 0')
    a(f'v_cmp_nle_f32 s[30:31], {v(V_T1)}, {v(V_IDX+4)}') if False else None
    a.l = [x for x in a.l if x is not None]
    a(f'v_mov_b32 {v(V_T3)}, {THRESH}')
    a(f'v_cmp_nle_f32 s[30:31], {v(V_T1)}, {v(V_T3)}')
    a(f'v_add_u32 {v(V_T1)}, 0x1ffff, {v(V_T1)}')
    a(f'v_lshrrev_b32 {v(V_T1)}, 16, {v(V_T1)}')
    a(f'v_or_b32 {v(V_T1)}, 0x8000, {v(V_T1)}')
    a(f'v_cndmask_b32 {v(V_QHI+1)}, 0, {v(V_T1)}, vcc')
    a('s_cmp_lg_u64 s[30:31], 0')
    a('s_cselect_b32 s30, 1, 0')
    a(f'v_mov_b32 {v(V_T1)}, s30')
    a(f's_lshl_b32 s31, s10, 2')
    a(f'v_mov_b32 {v(V_T2)}, s31')
    a(f'ds_write_b32 {v(V_T2)}, {v(V_T1)} offset:{FLAG_LDS & 0xffff}') if False else None
    a.l = [x for x in a.l if x is not None]
    a(f'v_add_u32 {v(V_T2)}, {FLAG_LDS}, {v(V_T2)}')
    a(f'ds_write_b32 {v(V_T2)}, {v(V_T1)}')
    a('s_waitcnt lgkmcnt(0)')
    a('s_barrier')
    a(f'v_mov_b32 {v(V_T2)}, {FLAG_LDS}')
    a(f'ds_read_b128 {v(V_S0,4)}, {v(V_T2)}')
    a(f'ds_read_b128 {v(V_S0+4,4)}, {v(V_T2)} offset:16')
    a('s_waitcnt lgkmcnt(0)')
    a(f'v_or3_b32 {v(V_S0)}, {v(V_S0)}, {v(V_S0+1)}, {v(V_S0+2)}')
    a(f'v_or3_b32 {v(V_S0+3)}, {v(V_S0+3)}, {v(V_S0+4)}, {v(V_S0+5)}')
    a(f'v_or3_b32 {v(V_S0)}, {v(V_S0)}, {v(V_S0+6)}, {v(V_S0+7)}')
    a(f'v_or_b32 {v(V_S0)}, {v(V_S0)}, {v(V_S0+3)}')
    a('s_nop 0')
    a(f'v_readfirstlane_b32 s30, {v(V_S0)}')
    a('s_cmp_lg_u32 s30, 0')
    a(f's_cbranch_scc1 L_fb_{name}')
    a(f'L_fbret_{name}:')
    need = [-(-19456*(c+1)//8192) for c in range(8)]
    a(f's_waitcnt vmcnt({19-need[0]})')
    a('s_barrier')
    if stamp: a('s_memtime s[44:45]')
    a(f'ds_read_b128 {v(V_KLO,4)}, {v(V_AK)} offset:{KLO_O}')
    a(f'ds_read_b32 {v(V_KHI)}, {v(V_AH)}')
    a(f's_waitcnt lgkmcnt(0)')
    a(f'v_mfma_f32_32x32x16_bf16 {v(V_S0,16)}, {v(V_KLO,4)}, {v(V_QLO,4)}, 0')
    a(f'v_mfma_f32_32x32x8bf16_1k {v(V_S0,16)}, {v(V_KHI,2)}, {v(V_QHI,2)}, {v(V_S0,16)}')
    a(f'ds_read_b128 {v(V_KLO,4)}, {v(V_AK)} offset:{TILE_B+KLO_O}')
    a(f'ds_read_b32 {v(V_KHI)}, {v(V_AH)} offset:{TILE_B}')
    a(f'ds_read_b128 {v(V_V0,4)}, {v(V_AV)}')
    a(f'ds_read_b128 {v(V_V0+4,4)}, {v(V_AV)} offset:640')
    a('s_nop 7')
    if DEBUG:
        a('s_nop 15')
        a(f'v_lshlrev_b32 {v(V_T3)}, 6, v0')
        a(f's_mov_b32 s30, {FLAG_OFF}')
        a('s_cmp_eq_u32 s2, 0')
        a(f's_cbranch_scc0 L_dbgskip_{name}')
        for r in range(4):
            a(f'buffer_store_dwordx4 {v(V_S0+4*r,4)}, {v(V_T3)}, s[4:7], s30 offen offset:{16*r}')
        a(f's_waitcnt lgkmcnt(0)')
        a(f's_add_u32 s30, s30, 32768')
        a(f'buffer_store_dwordx4 {v(V_KLO,4)}, {v(V_T3)}, s[4:7], s30 offen')
        a(f'buffer_store_dwordx4 {v(V_V0,4)}, {v(V_T3)}, s[4:7], s30 offen offset:16')
        a(f'buffer_store_dwordx4 {v(V_QLO,4)}, {v(V_T3)}, s[4:7], s30 offen offset:32')
        a(f'buffer_store_dwordx2 {v(V_QHI,2)}, {v(V_T3)}, s[4:7], s30 offen offset:48')
        a(f'buffer_store_dwordx2 {v(V_KHI,2)}, {v(V_T3)}, s[4:7], s30 offen offset:56')
        a(f's_waitcnt vmcnt(0)')
        a(f'L_dbgskip_{name}:')
    if PRIO is not None: a('s_setprio 1')
    if ONEWAVE:
        a('s_waitcnt vmcnt(0)')
        a('s_barrier')
        a('s_cmp_ge_u32 s10, 4')
        a(f's_cbranch_scc1 L_end_{name}')
    a('s_mov_b32 s23, 0')
    a(f'L_loop_{name}:')
    def barrier(a):
        lab = f'L_w_{name}'
        a('s_cmp_ge_u32 s23, 2')
        a(f's_cbranch_scc1 {lab}_j')
        a('s_cmp_eq_u32 s23, 0')
        a(f's_cbranch_scc0 {lab}_1')
        a(f's_waitcnt vmcnt({19-need[1]})')
        a(f's_branch {lab}_b')
        a(f'{lab}_1:')
        a('s_waitcnt vmcnt(0)')
        a(f'{lab}_b:')
        a('s_barrier')
        a(f'{lab}_j:')
    def mkpre(p):
        def pre(a):
            lab = f'L_p{p}_{name}_{pre.n}'
            a('s_cmp_ge_u32 s10, 4')
            a(f's_cbranch_scc1 {lab}')
            a(f's_setprio {p}')
            a(f'{lab}:')
        pre.n = p
        return pre
    for j in range(8):
        pre = None
        if PRIO is not None:
            if j == 0: pre = mkpre(2)
            if j == PRIO: pre = mkpre(0)
        emit_tile(a, j, barrier=barrier if j == 6 else None, pre=pre)
    a(f'v_add_u32 {v(V_AK)}, {8*TILE_B}, {v(V_AK)}')
    a(f'v_add_u32 {v(V_AH)}, {8*TILE_B}, {v(V_AH)}')
    a(f'v_add_u32 {v(V_AV)}, {8*TILE_B}, {v(V_AV)}')
    a('s_add_u32 s23, s23, 1')
    a('s_cmp_lt_u32 s23, 8')
    a(f's_cbranch_scc1 L_loop_{name}')
    if stamp: a('s_memtime s[46:47]')
    a('s_nop 1')
    a(f'v_smfmac_f32_32x32x32_bf16 {v(V_ACC,16)}, {v(V_V1+4,4)}, {v(V_S1+8,8)}, {v(V_IDX)}')
    a('s_waitcnt lgkmcnt(0)')
    a('s_nop 15')
    a(f'v_mov_b32 {v(V_T0)}, {v(V_ACC+10)}')
    a(f'v_mov_b32 {v(V_T1)}, {v(V_ACC+10)}')
    a('s_nop 1')
    a(f'v_permlane32_swap_b32 {v(V_T0)}, {v(V_T1)}')
    a('s_nop 1')
    a(f'v_rcp_f32 {v(V_T0)}, {v(V_T0)}')
    a('s_nop 0')
    for r in range(10): a(f'v_mul_f32 {v(V_ACC+r)}, {v(V_ACC+r)}, {v(V_T0)}')
    for p in range(5): a(f'v_cvt_pk_bf16_f32 {v(V_S0+p)}, {v(V_ACC+2*p)}, {v(V_ACC+2*p+1)}')
    a('s_nop 1')
    a(f'v_permlane32_swap_b32 {v(V_S0)}, {v(V_S0+2)}')
    a(f'v_permlane32_swap_b32 {v(V_S0+1)}, {v(V_S0+3)}')
    a(f'v_and_b32 {v(V_T1)}, 31, {v(V_LANE)}')
    a(f'v_lshrrev_b32 {v(V_T2)}, 5, {v(V_LANE)}')
    a(f'v_lshlrev_b32 {v(V_T3)}, 5, {v(V_T1)}')
    a(f'v_lshl_add_u32 {v(V_T3)}, {v(V_T2)}, 4, {v(V_T3)}')
    a('s_lshl_b32 s16, s8, 16')
    a('s_lshl_b32 s17, s15, 10')
    a('s_add_u32 s16, s16, s17')
    a(f's_add_u32 s16, s16, {OLO_OFF}')
    a(f'buffer_store_dwordx4 {v(V_S0,4)}, {v(V_T3)}, s[4:7], s16 offen')
    a(f'v_lshlrev_b32 {v(V_T3)}, 7, {v(V_T1)}')
    a('s_lshl_b32 s16, s15, 12')
    a('s_lshl_b32 s17, s8, 2')
    a('s_add_u32 s16, s16, s17')
    a(f's_add_u32 s16, s16, {OHI_OFF}')
    a(f'v_cmp_gt_u32 vcc, 32, {v(V_LANE)}')
    a('s_and_saveexec_b64 s[24:25], vcc')
    a(f'buffer_store_dword {v(V_S0+4)}, {v(V_T3)}, s[4:7], s16 offen')
    a('s_mov_b64 exec, s[24:25]')
    if stamp:
        a('s_waitcnt vmcnt(0)')
        a('s_memtime s[48:49]')
        a('s_waitcnt lgkmcnt(0)')
        a('s_sub_u32 s44, s44, s42')
        a('s_sub_u32 s46, s46, s42')
        a('s_sub_u32 s48, s48, s42')
        a('s_cmp_eq_u32 s2, 0')
        a(f's_cbranch_scc0 L_end_{name}')
        a(f'v_mov_b32 {v(V_T0)}, s44')
        a(f'v_mov_b32 {v(V_T1)}, s46')
        a(f'v_mov_b32 {v(V_T2)}, s48')
        a(f's_lshl_b32 s16, s10, 4')
        a(f'v_mov_b32 {v(V_T3)}, s16')
        a(f'v_cmp_eq_u32 vcc, 0, {v(V_LANE)}')
        a('s_and_saveexec_b64 s[24:25], vcc')
        a(f'global_store_dwordx3 {v(V_T3)}, {v(V_T0,3)}, s[40:41]')
    a(f's_branch L_end_{name}')
    a(f'L_fb_{name}:')
    a('s_waitcnt vmcnt(0)')
    a('s_barrier')
    a(f'v_mov_b32 {v(V_QHI+1)}, 0')
    a(f'v_mov_b32 {v(V_T0)}, 0xff800000')
    a(f'v_mov_b32 {v(V_T1)}, {v(V_AK)}')
    a(f'v_mov_b32 {v(V_T2)}, {v(V_AH)}')
    a('s_mov_b32 s23, 64')
    a(f'L_fbl_{name}:')
    a(f'ds_read_b128 {v(V_KLO,4)}, {v(V_T1)}')
    a(f'ds_read_b32 {v(V_KHI)}, {v(V_T2)}')
    a('s_waitcnt lgkmcnt(0)')
    a(f'v_mfma_f32_32x32x16_bf16 {v(V_S0,16)}, {v(V_KLO,4)}, {v(V_QLO,4)}, 0')
    a('s_nop 15')
    a(f'v_mfma_f32_32x32x8bf16_1k {v(V_S0,16)}, {v(V_KHI,2)}, {v(V_QHI,2)}, {v(V_S0,16)}')
    a(f'v_add_u32 {v(V_T1)}, {TILE_B}, {v(V_T1)}')
    a(f'v_add_u32 {v(V_T2)}, {TILE_B}, {v(V_T2)}')
    a('s_nop 15')
    for r in range(0,16,2): a(f'v_max3_f32 {v(V_T0)}, {v(V_S0+r)}, {v(V_S0+r+1)}, {v(V_T0)}')
    a('s_sub_u32 s23, s23, 1')
    a('s_cmp_lg_u32 s23, 0')
    a(f's_cbranch_scc1 L_fbl_{name}')
    a(f'v_mov_b32 {v(V_T1)}, {v(V_T0)}')
    a('s_nop 1')
    a(f'v_permlane32_swap_b32 {v(V_T0)}, {v(V_T1)}')
    a('s_nop 1')
    a(f'v_max_f32 {v(V_T0)}, {v(V_T0)}, {v(V_T1)}')
    a(f'v_sub_f32 {v(V_T0)}, 0, {v(V_T0)}')
    a(f'v_and_b32 {v(V_T1)}, 0xffff0000, {v(V_T0)}')
    a(f'v_sub_f32 {v(V_T0)}, {v(V_T0)}, {v(V_T1)}')
    a(f'v_and_b32 {v(V_T2)}, 0xffff0000, {v(V_T0)}')
    a(f'v_sub_f32 {v(V_T0)}, {v(V_T0)}, {v(V_T2)}')
    a(f'v_lshrrev_b32 {v(V_T0)}, 16, {v(V_T0)}')
    a(f'v_lshrrev_b32 {v(V_T1)}, 16, {v(V_T1)}')
    a(f'v_or_b32 {v(V_T1)}, {v(V_T1)}, {v(V_T2)}')
    a(f'v_cmp_gt_u32 vcc, 32, {v(V_LANE)}')
    a('s_nop 1')
    a(f'v_cndmask_b32 {v(V_QHI+1)}, {v(V_T0)}, {v(V_T1)}, vcc')
    a(f's_branch L_fbret_{name}')
    a(f'L_end_{name}:')
    a('s_endpgm')
    return a.text()

if __name__ == '__main__':
    import sys
    DEBUG = False
    opts = sys.argv[2:]
    PRIO = None
    for o in opts:
        if o.startswith('p'): PRIO = int(o[1:])
        if o == 'nods': NODS = True
        if o == 'nobar': NOBAR = True
        if o == 'nowait': NOWAIT = True
        if o == 'one': ONEWAVE = True
    name = 'attn_kernel'
    txt = HEADER + f'; @launch kernel={name} grid=(256,1,1) block=(512,1,1) lds=163840\n'
    txt += '.amdgcn_target "amdgcn-amd-amdhsa--gfx950"\n.text\n'
    txt += emit_attn_kernel(name, stamp=True)
    txt += '.section .rodata,"a"\n' + kd(name, NV_ATTN)
    open(sys.argv[1], 'w').write(txt)
```

```python
from asmb import *
from layout import *

HC_COPY = 4160
UB_O = 4*HC_COPY
CH_STRIDE = 23040
RED_O = 3*CH_STRIDE
V_LANE=1; T0=2; T1=3; T2=4; T3=5; T4=6; T5=7
AA=8; AB=9
DG=10
BF0=16; AF0=32; BF1=48; AF1=64
Y=80; YS=96
NV_CONV=128

def emit_conv_body(a, name, lds0=0):
    a('s_cmp_lt_u32 s2, 64')
    a('s_cselect_b32 s36, 3, 2')
    a('s_mul_i32 s37, s2, 3')
    a('s_lshl_b32 s38, s2, 1')
    a('s_add_u32 s38, s38, 64')
    a('s_cmp_lt_u32 s2, 64')
    a('s_cselect_b32 s37, s37, s38')
    a('s_mov_b32 s39, 0')
    a(f'L_stage_{name}:')
    a('s_add_u32 s40, s37, s39')
    a(f's_mul_i32 s41, s39, {CH_STRIDE}')
    if lds0: a(f's_add_u32 s41, s41, {lds0}')
    a(f's_lshl_b32 s42, s40, 12')
    a(f's_sub_u32 s42, s42, 64')
    a(f'v_lshlrev_b32 {v(T0)}, 4, v0')
    a(f'v_add_u32 {v(T1)}, s42, {v(T0)}')
    a(f'v_add_u32 {v(T2)}, 16, {v(T1)}')
    a(f'v_cmp_gt_u32 vcc, 260, v0')
    a(f's_and_saveexec_b64 s[44:45], vcc')
    a(f's_cbranch_execz L_sh_{name}')
    a(f'buffer_load_dwordx4 {v(16,4)}, {v(T1)}, s[24:27], 0 offen')
    a(f'buffer_load_dwordx2 {v(20,2)}, {v(T2)}, s[24:27], 0 offen')
    a(f'v_cmp_lt_u32 vcc, 3, v0')
    a(f'v_cmp_lt_u32 s[46:47], 2, v0')
    a(f'v_add_u32 {v(T0)}, s41, {v(T0)}')
    a('s_waitcnt vmcnt(0)')
    for i in range(4): a(f'v_cndmask_b32 {v(16+i)}, 0, {v(16+i)}, vcc')
    for i in range(4,6): a(f'v_cndmask_b32 {v(16+i)}, 0, {v(16+i)}, s[46:47]')
    for i in range(5): a(f'v_alignbit_b32 {v(24+i)}, {v(17+i)}, {v(16+i)}, 16')
    a(f'ds_write_b128 {v(T0)}, {v(24,4)}')
    a(f'v_mov_b32 {v(32)}, {v(17)}\nv_mov_b32 {v(33)}, {v(18)}\nv_mov_b32 {v(34)}, {v(19)}\nv_mov_b32 {v(35)}, {v(20)}')
    a(f'v_mov_b32 {v(36)}, {v(25)}\nv_mov_b32 {v(37)}, {v(26)}\nv_mov_b32 {v(38)}, {v(27)}\nv_mov_b32 {v(39)}, {v(28)}')
    a(f'ds_write_b128 {v(T0)}, {v(32,4)} offset:{HC_COPY}')
    a(f'ds_write_b128 {v(T0)}, {v(36,4)} offset:{2*HC_COPY}')
    a(f'ds_write_b128 {v(T0)}, {v(18,4)} offset:{3*HC_COPY}')
    a(f'L_sh_{name}:')
    a(f's_mov_b64 exec, s[44:45]')
    a(f's_mul_i32 s43, s40, 7282')
    a(f's_lshr_b32 s43, s43, 20')
    a(f's_mul_i32 s48, s43, 144')
    a(f's_sub_u32 s48, s40, s48')
    a(f's_mul_i32 s43, s43, 9216')
    a(f's_lshl_b32 s48, s48, 6')
    a(f's_add_u32 s43, s43, s48')
    a(f's_add_u32 s43, s43, {UR_OFF + 63*4*9216}')
    a(f'v_lshrrev_b32 {v(T0)}, 2, v0')
    a(f'v_and_b32 {v(T1)}, 3, v0')
    a(f'v_mul_u32_u24 {v(T2)}, {4*9216}, {v(T0)}')
    a(f'v_lshlrev_b32 {v(T3)}, 4, {v(T1)}')
    a(f'v_sub_u32 {v(T2)}, {v(T3)}, {v(T2)}')
    a(f'v_add_u32 {v(T2)}, s43, {v(T2)}')
    a(f'v_mul_u32_u24 {v(T4)}, 80, {v(T0)}')
    a(f'v_add3_u32 {v(T4)}, {v(T4)}, {v(T3)}, s41')
    a(f'v_mov_b32 {v(16)}, 0\nv_mov_b32 {v(17)}, 0\nv_mov_b32 {v(18)}, 0\nv_mov_b32 {v(19)}, 0')
    a(f'v_cmp_gt_u32 vcc, 256, v0')
    a(f's_and_saveexec_b64 s[44:45], vcc')
    a(f's_cbranch_execz L_su_{name}')
    a(f'buffer_load_dwordx4 {v(16,4)}, {v(T2)}, s[4:7], 0 offen')
    a('s_waitcnt vmcnt(0)')
    a(f'L_su_{name}:')
    a(f's_mov_b64 exec, s[44:45]')
    a(f'v_cmp_gt_u32 vcc, {79*4}, v0')
    a(f's_and_saveexec_b64 s[44:45], vcc')
    a(f'ds_write_b128 {v(T4)}, {v(16,4)} offset:{UB_O}')
    a(f's_mov_b64 exec, s[44:45]')
    a('s_add_u32 s39, s39, 1')
    a('s_cmp_lt_u32 s39, s36')
    a(f's_cbranch_scc1 L_stage_{name}')
    a('s_waitcnt lgkmcnt(0)')
    a('s_barrier')
    a('s_mov_b32 s49, s10')
    a('s_lshl_b32 s50, s36, 2')
    a('s_mov_b32 s51, 0')
    a(f'L_unit_{name}:')
    a('s_lshr_b32 s39, s49, 2')
    a('s_bfe_u32 s52, s49, 0x10001')
    a('s_and_b32 s53, s49, 1')
    a(f's_mul_i32 s41, s39, {CH_STRIDE}')
    if lds0: a(f's_add_u32 s41, s41, {lds0}')
    a(f'v_and_b32 {v(T0)}, 15, {v(V_LANE)}')
    a(f'v_lshrrev_b32 {v(T1)}, 4, {v(V_LANE)}')
    a(f'v_sub_u32 {v(T2)}, 15, {v(T0)}')
    a(f'v_mul_u32_u24 {v(T2)}, 80, {v(T2)}')
    a(f'v_lshl_add_u32 {v(T2)}, {v(T1)}, 4, {v(T2)}')
    a(f's_mul_i32 s54, s53, 640')
    a(f's_add_u32 s54, s54, s41')
    a(f's_add_u32 s54, s54, {UB_O}')
    a(f'v_add_u32 {v(AB)}, s54, {v(T2)}')
    a(f'v_lshrrev_b32 {v(T2)}, 2, {v(T0)}')
    a(f'v_mul_u32_u24 {v(T2)}, {HC_COPY}, {v(T2)}')
    a(f'v_lshl_add_u32 {v(T2)}, {v(T1)}, 4, {v(T2)}')
    a(f'v_and_b32 {v(T3)}, 3, {v(V_LANE)}')
    a(f'v_lshl_add_u32 {v(T2)}, {v(T3)}, 3, {v(T2)}')
    a(f's_lshl_b32 s54, s52, 5')
    a(f's_lshl_b32 s55, s53, 9')
    a(f's_add_u32 s54, s54, s55')
    a(f's_add_u32 s54, s54, s41')
    a(f'v_add_u32 {v(AA)}, s54, {v(T2)}')
    for r in range(16): a(f'v_mov_b32 {v(Y+r)}, 0')
    def reads(B, A):
        for j in range(4): a(f'ds_read_b128 {v(B+4*j,4)}, {v(AB)} offset:{1280*(3-j)}')
        for q in range(4):
            for e in range(2): a(f'ds_read_b64_tr_b16 {v(A+4*q+2*e,2)}, {v(AA)} offset:{1024*q+8*e}')
        a(f'v_add_u32 {v(AB)}, 80, {v(AB)}')
        a(f'v_add_u32 {v(AA)}, 64, {v(AA)}')
    def mfmas(B, A):
        for q in range(4):
            for jt in range(q,4):
                a(f'v_mfma_f32_16x16x32_bf16 {v(Y+4*jt,4)}, {v(A+4*q,4)}, {v(B+4*(jt-q),4)}, {v(Y+4*jt,4)}')
    reads(BF0, AF0)
    a('s_cmp_eq_u32 s53, 0')
    a(f's_cbranch_scc0 L_nod_{name}')
    a('s_add_u32 s40, s37, s39')
    a('s_lshl_b32 s40, s40, 1')
    a('s_and_b32 s55, s40, 0xfffffffc')
    a('s_load_dword s56, s[28:29], s55')
    a(f's_lshl_b32 s54, s52, 4')
    a(f's_sub_u32 s54, 31, s54')
    a(f'v_sub_u32 {v(T2)}, s54, {v(T0)}')
    a(f'v_lshlrev_b32 {v(T3)}, 3, {v(T1)}')
    a(f'v_sub_u32 {v(T2)}, {v(T2)}, {v(T3)}')
    a('s_waitcnt lgkmcnt(0)')
    a('s_bitcmp1_b32 s40, 1')
    a('s_cselect_b32 s57, 16, 0')
    a('s_lshr_b32 s56, s56, s57')
    a('s_and_b32 s56, s56, 0xffff')
    a('s_lshl_b32 s57, s56, 16')
    a(f'v_mov_b32 {v(T4)}, s56')
    a(f'v_mov_b32 {v(T5)}, s57')
    for rho in range(4):
        a(f'v_cmp_eq_u32 vcc, {2*rho}, {v(T2)}')
        a(f'v_cmp_eq_u32 s[58:59], {2*rho+1}, {v(T2)}')
        a('s_nop 1')
        a(f'v_cndmask_b32 {v(14)}, 0, {v(T4)}, vcc')
        a(f'v_cndmask_b32 {v(15)}, 0, {v(T5)}, s[58:59]')
        a(f'v_or_b32 {v(DG+rho)}, {v(14)}, {v(15)}')
    a('s_nop 1')
    for jt in range(4):
        a(f'v_mfma_f32_16x16x32_bf16 {v(Y+4*jt,4)}, {v(DG,4)}, {v(BF0+4*jt,4)}, {v(Y+4*jt,4)}')
    a(f'L_nod_{name}:')
    a('s_mov_b32 s54, 4')
    a(f'L_r_{name}:')
    a('s_waitcnt lgkmcnt(0)')
    reads(BF1, AF1)
    mfmas(BF0, AF0)
    a('s_waitcnt lgkmcnt(0)')
    reads(BF0, AF0)
    mfmas(BF1, AF1)
    a('s_sub_u32 s54, s54, 1')
    a('s_cmp_lg_u32 s54, 0')
    a(f's_cbranch_scc1 L_r_{name}')
    a('s_waitcnt lgkmcnt(0)')
    a('s_nop 7')
    a('s_cmp_eq_u32 s53, 0')
    a(f's_cbranch_scc1 L_keep_{name}')
    a('s_lshr_b32 s54, s49, 1')
    a('s_lshl_b32 s54, s54, 12')
    a(f's_add_u32 s54, s54, {RED_O+lds0}')
    a(f'v_lshlrev_b32 {v(T2)}, 4, {v(V_LANE)}')
    a(f'v_add_u32 {v(T2)}, s54, {v(T2)}')
    for jt in range(4): a(f'ds_write_b128 {v(T2)}, {v(Y+4*jt,4)} offset:{1024*jt}')
    a(f's_branch L_next_{name}')
    a(f'L_keep_{name}:')
    a('s_cmp_eq_u32 s51, 0')
    a(f's_cbranch_scc0 L_next_{name}')
    for r in range(16): a(f'v_mov_b32 {v(YS+r)}, {v(Y+r)}')
    a(f'L_next_{name}:')
    a('s_add_u32 s49, s49, 8')
    a('s_add_u32 s51, s51, 1')
    a('s_cmp_lt_u32 s49, s50')
    a(f's_cbranch_scc1 L_unit_{name}')
    a('s_waitcnt lgkmcnt(0)')
    a('s_barrier')
    a('s_bitcmp1_b32 s10, 0')
    a(f's_cbranch_scc1 L_cdone_{name}')
    a('s_mov_b32 s49, s10')
    a(f'L_fin_{name}:')
    a('s_lshr_b32 s54, s49, 1')
    a('s_lshl_b32 s54, s54, 12')
    a(f's_add_u32 s54, s54, {RED_O+lds0}')
    a(f'v_lshlrev_b32 {v(T2)}, 4, {v(V_LANE)}')
    a(f'v_add_u32 {v(T2)}, s54, {v(T2)}')
    for jt in range(4): a(f'ds_read_b128 {v(BF0+4*jt,4)}, {v(T2)} offset:{1024*jt}')
    a('s_lshr_b32 s39, s49, 2')
    a('s_add_u32 s40, s37, s39')
    a('s_lshl_b32 s40, s40, 12')
    a('s_bfe_u32 s52, s49, 0x10001')
    a('s_lshl_b32 s52, s52, 5')
    a('s_add_u32 s40, s40, s52')
    a(f's_add_u32 s40, s40, {Y_OFF}')
    a(f'v_and_b32 {v(T0)}, 15, {v(V_LANE)}')
    a(f'v_lshrrev_b32 {v(T1)}, 4, {v(V_LANE)}')
    a(f'v_lshlrev_b32 {v(T0)}, 6, {v(T0)}')
    a(f'v_lshl_add_u32 {v(T0)}, {v(T1)}, 3, {v(T0)}')
    a('s_waitcnt lgkmcnt(0)')
    for jt in range(4):
        for r in range(4): a(f'v_add_f32 {v(BF0+4*jt+r)}, {v(BF0+4*jt+r)}, {v(YS+4*jt+r)}')
        a(f'v_cvt_pk_bf16_f32 {v(AF0+2*jt)}, {v(BF0+4*jt)}, {v(BF0+4*jt+1)}')
        a(f'v_cvt_pk_bf16_f32 {v(AF0+2*jt+1)}, {v(BF0+4*jt+2)}, {v(BF0+4*jt+3)}')
        a(f'buffer_store_dwordx2 {v(AF0+2*jt,2)}, {v(T0)}, s[4:7], s40 offen offset:{1024*jt}')
    a('s_add_u32 s49, s49, 8')
    a('s_cmp_lt_u32 s49, s50')
    a(f's_cbranch_scc0 L_cdone_{name}')
    for r in range(16): a(f'v_mov_b32 {v(YS+r)}, {v(Y+r)}')
    a(f's_branch L_fin_{name}')
    a(f'L_cdone_{name}:')

def emit_conv_kernel(name, stamp=False):
    a = Asm()
    a(f'.globl {name}\n.p2align 8\n.type {name},@function\n{name}:')
    a('s_cmp_ge_u32 s2, 256')
    a(f's_cbranch_scc1 L_end_{name}')
    a('s_load_dwordx2 s[4:5], s[0:1], 96')
    a('s_load_dwordx2 s[24:25], s[0:1], 56')
    a('s_load_dwordx2 s[28:29], s[0:1], 64')
    if stamp:
        a('s_load_dwordx2 s[60:61], s[0:1], 88')
        a('s_memtime s[62:63]')
    a(f'v_lshrrev_b32 {v(T0)}, 6, v0')
    a(f'v_and_b32 {v(V_LANE)}, 63, v0')
    a(f'v_readfirstlane_b32 s10, {v(T0)}')
    a('s_waitcnt lgkmcnt(0)')
    a(f's_mov_b32 s6, {WS_END}\ns_mov_b32 s7, 0x20000')
    a(f's_mov_b32 s26, {576*4096}\ns_mov_b32 s27, 0x20000')
    emit_conv_body(a, name)
    if stamp:
        a('s_waitcnt vmcnt(0)')
        a('s_memtime s[68:69]')
        a('s_waitcnt lgkmcnt(0)')
        a('s_sub_u32 s68, s68, s62')
        a('s_cmp_eq_u32 s2, 0')
        a(f's_cbranch_scc0 L_end_{name}')
        a(f'v_mov_b32 {v(T0)}, s68')
        a(f's_lshl_b32 s14, s10, 4')
        a(f'v_mov_b32 {v(T3)}, s14')
        a(f'v_cmp_eq_u32 vcc, 0, {v(V_LANE)}')
        a('s_and_saveexec_b64 s[40:41], vcc')
        a(f'global_store_dword {v(T3)}, {v(T0)}, s[60:61]')
    a(f'L_end_{name}:')
    a('s_endpgm')
    return a.text()

if __name__ == '__main__':
    import sys
    name = 'conv_kernel'
    txt = HEADER + f'; @launch kernel={name} grid=(256,1,1) block=(512,1,1) lds=163840\n'
    txt += '.amdgcn_target "amdgcn-amd-amdhsa--gfx950"\n.text\n'
    txt += emit_conv_kernel(name, stamp=True)
    txt += '.section .rodata,"a"\n' + kd(name, NV_CONV)
    open(sys.argv[1], 'w').write(txt)
```

```python
S=2048; D=576; H=32; DH=18
TILE_B = 2432
KLO_O, KHI_O, V_O = 0, 1024, 1152
KV_HEAD = 64*TILE_B
KV_OFF  = 0
QLO_OFF = 0x500000
QHI_OFF = QLO_OFF + 32*65536
NRM_OFF = QHI_OFF + 32*8192
G_OFF   = NRM_OFF + 8192
UR_OFF  = G_OFF + 8192
Y_OFF   = UR_OFF + 576*4096
OLO_OFF = Y_OFF + 576*4096
OHI_OFF = OLO_OFF + 32*65536
WOF_OFF = OHI_OFF + 2048*128
FLAG_OFF = WOF_OFF + 576*576*2
WS_END  = FLAG_OFF + 65536
CSCALE = 1.4426950408889634 / (18 ** 0.5)
def lo_dims(h):
    return (list(range(16)), [16,17]) if h % 2 == 0 else (list(range(2,18)), [0,1])
if __name__ == '__main__':
    for k,v in list(globals().items()):
        if k.endswith('_OFF') or k.endswith('END'): print(k, hex(v))
```

```python
from asmb import *
from layout import *

V_LANE=1; T0=2; T1=3; T2=4; T3=5; T4=6; T5=7
NV_OUT=256

def emit_wof(a, name, m_sreg):
    a(f's_lshl_b32 s14, {m_sreg}, 8')
    a('s_add_u32 s14, s14, s2')
    a('s_cmp_ge_u32 s14, 648')
    a(f's_cbranch_scc1 L_wofend_{name}')
    a('s_mul_i32 s15, s14, 1821')
    a('s_lshr_b32 s15, s15, 16')
    a('s_mul_i32 s16, s15, 36')
    a('s_sub_u32 s16, s14, s16')
    a(f'v_and_b32 {v(T0)}, 15, {v(V_LANE)}')
    a(f'v_lshrrev_b32 {v(T1)}, 4, {v(V_LANE)}')
    a(f'v_lshrrev_b32 {v(T2)}, 1, {v(T1)}')
    a(f'v_mul_u32_u24 {v(T2)}, 20, {v(T2)}')
    a(f'v_and_b32 {v(T3)}, 1, {v(T1)}')
    a(f'v_lshl_add_u32 {v(T2)}, {v(T3)}, 3, {v(T2)}')
    a(f'v_mul_u32_u24 {v(T3)}, 72, {v(T1)}')
    a('s_cmp_lt_u32 s15, 16')
    a('s_cselect_b64 vcc, -1, 0')
    a('s_mul_i32 s17, s15, 36')
    a('s_sub_u32 s18, s15, 16')
    a('s_mul_i32 s18, s18, 288')
    a('s_cselect_b32 s17, s17, s18')
    a.l.pop()
    a('s_cmp_lt_u32 s15, 16')
    a('s_cselect_b32 s17, s17, s18')
    a(f'v_cndmask_b32 {v(T2)}, {v(T3)}, {v(T2)}, vcc')
    a(f'v_add_u32 {v(T2)}, s17, {v(T2)}')
    a(f'v_mul_u32_u24 {v(T2)}, 1152, {v(T2)}')
    a(f's_lshl_b32 s16, s16, 5')
    a(f'v_lshl_add_u32 {v(T2)}, {v(T0)}, 1, {v(T2)}')
    a(f'v_add_u32 {v(T2)}, s16, {v(T2)}')
    lo = [0,1,2,3,4,5,6,7]; hi = [16,17,18,19,52,53,54,55]
    for j in range(8):
        a('s_cmp_lt_u32 s15, 16')
        a(f's_movk_i32 s19, {lo[j]*1152}')
        a(f's_cselect_b32 s18, s19, {hi[j]*1152}')
        a(f'buffer_load_ushort {v(12+j)}, {v(T2)}, s[44:47], s18 offen')
    a(f's_lshl_b32 s14, s14, 10')
    a(f's_add_u32 s14, s14, {WOF_OFF}')
    a(f'v_lshlrev_b32 {v(T3)}, 4, {v(V_LANE)}')
    a('s_waitcnt vmcnt(0)')
    for p in range(4): a(f'v_lshl_or_b32 {v(8+p)}, {v(13+2*p)}, 16, {v(12+2*p)}')
    a(f'buffer_store_dwordx4 {v(8,4)}, {v(T3)}, s[4:7], s14 offen')
    a(f'L_wofend_{name}:')

AF=16
AF8=88
BFR=160
ACC=176
XR=188
YR=194
GX=208
def emit_out_body(a, name):
    a('s_and_b32 s12, s2, 7')
    a('s_lshr_b32 s13, s2, 3')
    a('s_lshr_b32 s14, s13, 2')
    a('s_lshl_b32 s8, s12, 8')
    a('s_lshl_b32 s14, s14, 5')
    a('s_add_u32 s8, s8, s14')
    a('s_and_b32 s9, s13, 3')
    a(f'v_lshlrev_b32 {v(T5)}, 4, {v(V_LANE)}')
    a('s_mul_i32 s14, s9, 9')
    a('s_add_u32 s15, s14, s10')
    a('s_lshl_b32 s15, s15, 10')
    a(f's_add_u32 s15, s15, {WOF_OFF}')
    for k in range(18):
        a(f'buffer_load_dwordx4 {v(AF+4*k,4)}, {v(T5)}, s[4:7], s15 offen')
        if k < 17: a(f's_add_u32 s15, s15, {36*1024}')
    a('s_cmp_lt_u32 s10, 2')
    a(f's_cbranch_scc0 L_no8_{name}')
    a('s_add_u32 s15, s14, 8')
    a('s_lshl_b32 s15, s15, 10')
    a(f's_add_u32 s15, s15, {WOF_OFF}')
    for k in range(18):
        a(f'buffer_load_dwordx4 {v(AF8+4*k,4)}, {v(T5)}, s[4:7], s15 offen')
        if k < 17: a(f's_add_u32 s15, s15, {36*1024}')
    a(f'L_no8_{name}:')
    a(f'v_and_b32 {v(T0)}, 15, {v(V_LANE)}')
    a(f'v_lshrrev_b32 {v(T1)}, 4, {v(V_LANE)}')
    a(f'v_mul_u32_u24 {v(T2)}, 1152, {v(T0)}')
    a(f'v_lshl_add_u32 {v(T2)}, {v(T1)}, 3, {v(T2)}')
    a('s_mul_i32 s28, s8, 1152')
    a('s_mul_i32 s29, s9, 288')
    a('s_add_u32 s28, s28, s29')
    a('s_lshl_b32 s29, s10, 5')
    a('s_add_u32 s30, s28, s29')
    a(f's_add_u32 s31, s30, {16*1152}')
    a(f's_mul_i32 s32, s10, {16*1152}')
    a('s_add_u32 s32, s32, s28')
    a('s_add_u32 s32, s32, 256')
    a(f'buffer_load_dwordx2 {v(XR,2)}, {v(T2)}, s[16:19], s30 offen')
    a(f'buffer_load_dwordx2 {v(XR+2,2)}, {v(T2)}, s[16:19], s31 offen')
    a(f'buffer_load_dwordx2 {v(XR+4,2)}, {v(T2)}, s[16:19], s32 offen')
    a(f'v_lshlrev_b32 {v(T3)}, 14, {v(T1)}')
    a(f'v_lshl_add_u32 {v(T3)}, {v(T0)}, 1, {v(T3)}')
    a(f's_mul_i32 s33, s9, {144*4096}')
    a('s_lshl_b32 s34, s8, 1')
    a('s_add_u32 s33, s33, s34')
    a(f's_add_u32 s33, s33, {Y_OFF}')
    a('s_lshl_b32 s34, s10, 16')
    a('s_add_u32 s34, s34, s33')
    a('s_lshl_b32 s35, s10, 5')
    a('s_add_u32 s35, s35, s33')
    a(f's_add_u32 s35, s35, {8*16*4096}')
    for r in range(4):
        a(f's_add_u32 s36, s34, {r*4096}')
        a(f'buffer_load_ushort {v(YR+r)}, {v(T3)}, s[4:7], s36 offen')
        a(f'buffer_load_ushort {v(YR+4+r)}, {v(T3)}, s[4:7], s36 offen offset:32')
        a(f's_add_u32 s36, s35, {r*4096}')
        a(f'buffer_load_ushort {v(YR+8+r)}, {v(T3)}, s[4:7], s36 offen')
    a(f'v_add_u32 {v(T4)}, s8, {v(T1)}')
    a('s_lshl_b32 s36, s10, 2')
    a(f'v_add_u32 {v(T4)}, s36, {v(T4)}')
    a('s_mov_b32 s36, 1152')
    a(f'v_mul_lo_u32 {v(T4)}, {v(T4)}, s36')
    a(f'v_lshl_add_u32 {v(T4)}, {v(T0)}, 4, {v(T4)}')
    a(f'v_lshlrev_b32 {v(14)}, 4, {v(T0)}')
    GW = GX+20
    for m in range(5):
        if m == 4:
            a(f'v_cmp_gt_u32 vcc, 8, {v(T0)}')
            for i in range(4): a(f'v_mov_b32 {v(GX+16+i)}, 0\nv_mov_b32 {v(GW+16+i)}, 0')
            a('s_and_saveexec_b64 s[38:39], vcc')
        a(f'buffer_load_dwordx4 {v(GX+4*m,4)}, {v(T4)}, s[16:19], 0 offen offset:{256*m}')
        a(f'buffer_load_dwordx4 {v(GW+4*m,4)}, {v(14)}, s[24:27], 0 offen offset:{256*m}')
        if m == 4: a('s_mov_b64 exec, s[38:39]')
    return

def emit_out_part2(a, name):
    GW = GX+20
    a(f'v_and_b32 {v(T0)}, 15, {v(V_LANE)}')
    a(f'v_lshrrev_b32 {v(T1)}, 4, {v(V_LANE)}')
    a(f'v_lshrrev_b32 {v(8)}, 1, {v(T1)}')
    a(f'v_lshlrev_b32 {v(8)}, 16, {v(8)}')
    a(f'v_lshl_add_u32 {v(8)}, {v(T0)}, 5, {v(8)}')
    a(f'v_and_b32 {v(9)}, 1, {v(T1)}')
    a(f'v_lshl_add_u32 {v(8)}, {v(9)}, 4, {v(8)}')
    a(f'v_lshlrev_b32 {v(9)}, 7, {v(T0)}')
    a(f'v_lshl_add_u32 {v(9)}, {v(T1)}, 4, {v(9)}')
    a('s_mov_b32 s36, s10')
    a(f'L_odma_{name}:')
    a('s_lshr_b32 s37, s36, 1')
    a('s_and_b32 s38, s36, 1')
    a('s_lshl_b32 m0, s36, 10')
    a('s_lshl_b32 s39, s38, 4')
    a('s_add_u32 s39, s39, s8')
    a('s_cmp_lt_u32 s37, 16')
    a(f's_cbranch_scc0 L_ohi_{name}')
    a('s_lshl_b32 s40, s37, 17')
    a('s_lshl_b32 s39, s39, 5')
    a('s_add_u32 s40, s40, s39')
    a(f's_add_u32 s40, s40, {OLO_OFF}')
    a(f'buffer_load_dwordx4 {v(8)}, s[4:7], s40 offen lds')
    a(f's_branch L_onext_{name}')
    a(f'L_ohi_{name}:')
    a('s_sub_u32 s37, s37, 16')
    a('s_lshl_b32 s40, s37, 6')
    a('s_lshl_b32 s39, s39, 7')
    a('s_add_u32 s40, s40, s39')
    a(f's_add_u32 s40, s40, {OHI_OFF}')
    a(f'buffer_load_dwordx4 {v(9)}, s[4:7], s40 offen lds')
    a(f'L_onext_{name}:')
    a('s_add_u32 s36, s36, 8')
    a('s_cmp_lt_u32 s36, 36')
    a(f's_cbranch_scc1 L_odma_{name}')
    a('s_waitcnt vmcnt(5)')
    a('s_nop 0')
    a.l.pop()
    a.l.pop()
    a('s_waitcnt vmcnt(4)')
    G = 10
    a(f'v_mov_b32 {v(G)}, 0')
    for i in range(20): a(f'v_dot2_f32_bf16 {v(G)}, {v(GX+i)}, {v(GW+i)}, {v(G)}')
    a('s_nop 3')
    for sh in (8,4,2,1):
        a('s_nop 1')
        a(f'v_add_f32_dpp {v(G)}, {v(G)}, {v(G)} row_ror:{sh} row_mask:0xf bank_mask:0xf')
    a(f'v_mul_f32 {v(G)}, 0xbfb8aa3b, {v(G)}')
    a(f'v_exp_f32 {v(G)}, {v(G)}')
    a('s_nop 0')
    a(f'v_add_f32 {v(G)}, 1.0, {v(G)}')
    a(f'v_rcp_f32 {v(G)}, {v(G)}')
    a(f's_lshl_b32 s36, s10, 4')
    a(f'v_lshl_add_u32 {v(11)}, {v(T1)}, 2, s36')
    a(f'ds_write_b32 {v(11)}, {v(G)} offset:40960')
    for r in range(12): a(f'v_mov_b32 {v(ACC+r)}, 0')
    a('s_waitcnt vmcnt(0) lgkmcnt(0)')
    a('s_barrier')
    a(f'v_lshlrev_b32 {v(11)}, 2, {v(T0)}')
    a(f'ds_read_b32 {v(12)}, {v(11)} offset:40960')
    a(f'ds_read_b32 {v(13)}, {v(11)} offset:{40960+64}')
    a(f'v_lshlrev_b32 {v(T5)}, 4, {v(V_LANE)}')
    def rd(k):
        s = BFR + 8*(k % 2)
        a(f'ds_read_b128 {v(s,4)}, {v(T5)} offset:{(2*k)*1024}')
        a(f'ds_read_b128 {v(s+4,4)}, {v(T5)} offset:{(2*k+1)*1024}')
    rd(0)
    for k in range(18):
        if k+1 < 18: rd(k+1)
        a(f's_waitcnt lgkmcnt({2 if k+1 < 18 else 0})')
        s = BFR + 8*(k % 2)
        a(f'v_mfma_f32_16x16x32_bf16 {v(ACC,4)}, {v(AF+4*k,4)}, {v(s,4)}, {v(ACC,4)}')
        a(f'v_mfma_f32_16x16x32_bf16 {v(ACC+4,4)}, {v(AF+4*k,4)}, {v(s+4,4)}, {v(ACC+4,4)}')
        a('s_cmp_lt_u32 s10, 2')
        a(f's_cbranch_scc0 L_sk{k}_{name}')
        a('s_cmp_eq_u32 s10, 0')
        a(f's_cbranch_scc0 L_s1{k}_{name}')
        a(f'v_mfma_f32_16x16x32_bf16 {v(ACC+8,4)}, {v(AF8+4*k,4)}, {v(s,4)}, {v(ACC+8,4)}')
        a(f's_branch L_sk{k}_{name}')
        a(f'L_s1{k}_{name}:')
        a(f'v_mfma_f32_16x16x32_bf16 {v(ACC+8,4)}, {v(AF8+4*k,4)}, {v(s+4,4)}, {v(ACC+8,4)}')
        a(f'L_sk{k}_{name}:')
    a('s_nop 7')
    a(f'v_mul_u32_u24 {v(T2)}, 1152, {v(T0)}')
    a(f'v_lshl_add_u32 {v(T2)}, {v(T1)}, 3, {v(T2)}')
    a('s_cmp_eq_u32 s10, 1')
    a('s_cselect_b64 vcc, -1, 0')
    a(f'v_cndmask_b32 {v(14)}, {v(12)}, {v(13)}, vcc')
    for ti, (greg, soff) in enumerate(((12,'s30'),(13,'s31'),(14,'s32'))):
        if ti == 2:
            a('s_cmp_lt_u32 s10, 2')
            a(f's_cbranch_scc0 L_odone_{name}')
        a(f'v_sub_f32 {v(15)}, 1.0, {v(greg)}')
        for r in range(4):
            xs = XR + 2*ti + (r >> 1)
            if r & 1: a(f'v_and_b32 {v(T3)}, 0xffff0000, {v(xs)}')
            else: a(f'v_lshlrev_b32 {v(T3)}, 16, {v(xs)}')
            a(f'v_lshlrev_b32 {v(T4)}, 16, {v(YR+4*ti+r)}')
            a(f'v_mul_f32 {v(T3)}, {v(T3)}, {v(T4)}')
            a(f'v_mul_f32 {v(T3)}, {v(T3)}, {v(15)}')
            a(f'v_fma_f32 {v(ACC+4*ti+r)}, {v(ACC+4*ti+r)}, {v(greg)}, {v(T3)}')
        a(f'v_cvt_pk_bf16_f32 {v(8+2*(ti&1))}, {v(ACC+4*ti)}, {v(ACC+4*ti+1)}') if False else None
        d = 160 + 2*ti
        a(f'v_cvt_pk_bf16_f32 {v(d)}, {v(ACC+4*ti)}, {v(ACC+4*ti+1)}')
        a(f'v_cvt_pk_bf16_f32 {v(d+1)}, {v(ACC+4*ti+2)}, {v(ACC+4*ti+3)}')
        a(f'buffer_store_dwordx2 {v(d,2)}, {v(T2)}, s[20:23], {soff} offen')
    a(f'L_odone_{name}:')

def emit_out_kernel(name):
    a = Asm()
    a(f'.globl {name}\n.p2align 8\n.type {name},@function\n{name}:')
    a('s_cmp_ge_u32 s2, 256')
    a(f's_cbranch_scc1 L_end_{name}')
    a('s_load_dwordx2 s[4:5], s[0:1], 96')
    a('s_load_dwordx2 s[16:17], s[0:1], 0')
    a('s_load_dwordx2 s[20:21], s[0:1], 80')
    a('s_load_dwordx2 s[24:25], s[0:1], 72')
    a(f'v_lshrrev_b32 {v(T0)}, 6, v0')
    a(f'v_and_b32 {v(V_LANE)}, 63, v0')
    a(f'v_readfirstlane_b32 s10, {v(T0)}')
    a('s_waitcnt lgkmcnt(0)')
    a(f's_mov_b32 s6, {WS_END}\ns_mov_b32 s7, 0x20000')
    a(f's_mov_b32 s18, {2048*1152}\ns_mov_b32 s19, 0x20000')
    a(f's_mov_b32 s22, {2048*1152}\ns_mov_b32 s23, 0x20000')
    a(f's_mov_b32 s26, 1152\ns_mov_b32 s27, 0x20000')
    emit_out_body(a, name)
    emit_out_part2(a, name)
    a(f'L_end_{name}:')
    a('s_endpgm')
    a.l = [x for x in a.l if x is not None]
    return a.text()
```

```python
from asmb import *
from layout import *

STAGE = 33024; WOFF = 16384
V_LANE=1; T0=2; T1=3; T2=4; T3=5; T4=6; T5=7
AX0=8; AX1=9; AW=10; AWH=11; CX0=12; CX1=13; CW=14; CWH=15
PX=16; PW=17
XF=32
WF=48
ACC=64
NV_QKV=128
CS_BITS = 0x3eae1e3d
import struct
CS_BITS = struct.unpack('<I', struct.pack('<f', CSCALE))[0]

def srd(a, sreg, karg_off, size):
    a(f's_mov_b32 s{sreg+2}, {size}')
    a(f's_mov_b32 s{sreg+3}, 0x20000')

def emit_prep(a, name):
    K0=32; V0=56; TP=72; U=80
    a(f's_lshr_b32 s36, s2, 2')
    a(f's_and_b32 s37, s2, 3')
    a(f's_mul_i32 s38, s10, 36')
    a(f'v_add_u32 {v(T0)}, s38, {v(V_LANE)}')
    a(f'v_lshrrev_b32 {v(T1)}, 2, {v(T0)}')
    a(f'v_and_b32 {v(T2)}, 3, {v(T0)}')
    a(f's_lshl_b32 s38, s36, 5')
    a(f's_sub_u32 s38, s38, 3')
    a(f'v_lshl_add_u32 {v(T3)}, {v(T2)}, 3, s38')
    a(f'v_mul_lo_u32 {v(T3)}, {v(T3)}, s39')
    a(f's_mul_i32 s38, s37, 288')
    a(f'v_lshl_add_u32 {v(T4)}, {v(T1)}, 3, s38')
    a(f'v_add_u32 {v(T3)}, {v(T3)}, {v(T4)}')
    a(f'v_add_u32 {v(T5)}, 3456, {v(T3)}')
    a(f'v_lshlrev_b32 {v(T4)}, 2, {v(T4)}')
    a(f'v_cmp_gt_u32 vcc, 36, {v(V_LANE)}')
    a(f's_and_saveexec_b64 s[40:41], vcc')
    for r in range(11):
        if r and r % 3 == 0: a(f'v_add_u32 {v(T3)}, 3456, {v(T3)}')
        a(f'buffer_load_dwordx2 {v(K0+2*r,2)}, {v(T3)}, s[24:27], 0 offen offset:{(r%3)*1152}')
    for r in range(8):
        if r and r % 3 == 0: a(f'v_add_u32 {v(T5)}, 3456, {v(T5)}')
        a(f'buffer_load_dwordx2 {v(V0+2*r,2)}, {v(T5)}, s[28:31], 0 offen offset:{(r%3)*1152}')
    a(f'buffer_load_dwordx4 {v(TP,4)}, {v(T4)}, s[32:35], 0 offen')
    a(f'buffer_load_dwordx4 {v(TP+4,4)}, {v(T4)}, s[32:35], 0 offen offset:16')
    a(f's_lshl_b32 s38, s36, 2')
    a(f's_add_u32 s38, s38, s37')
    a(f's_mul_i32 s38, s38, 9216')
    a(f's_add_u32 s38, s38, {UR_OFF}')
    a(f'v_sub_u32 {v(T2)}, 3, {v(T2)}')
    a(f'v_lshlrev_b32 {v(T2)}, 4, {v(T2)}')
    a(f'v_lshl_add_u32 {v(T2)}, {v(T1)}, 8, {v(T2)}')
    a('s_waitcnt vmcnt(0)')
    W=80
    KF=84
    O=96
    for ch in range(4):
        d, hf = ch >> 1, ch & 1
        def unpack(dst, src, half):
            if half: a(f'v_and_b32 {v(dst)}, 0xffff0000, {v(src)}')
            else: a(f'v_lshlrev_b32 {v(dst)}, 16, {v(src)}')
        for j in range(4): unpack(W+j, TP+2*ch+(j>>1), j & 1)
        for r in range(11): unpack(KF+r, K0+2*r+d, hf)
        for t in range(8):
            a(f'v_mul_f32 {v(O+t)}, {v(W+0)}, {v(KF+t+3)}')
            for j in range(1,4): a(f'v_fmac_f32 {v(O+t)}, {v(W+j)}, {v(KF+t+3-j)}')
        for t in range(8):
            unpack(KF+t, V0+2*t+d, hf)
        for t in range(8): a(f'v_mul_f32 {v(O+t)}, {v(O+t)}, {v(KF+t)}')
        for p in range(4): a(f'v_cvt_pk_bf16_f32 {v(104+p)}, {v(O+7-2*p)}, {v(O+6-2*p)}')
        a(f'buffer_store_dwordx4 {v(104,4)}, {v(T2)}, s[4:7], s38 offen offset:{ch*64}')
        if ch < 3: a('s_nop 1')
    a(f's_mov_b64 exec, s[40:41]')

def emit_qkv_kernel(name, do_prep=True, stamp=False):
    a = Asm()
    a(f'.globl {name}\n.p2align 8\n.type {name},@function\n{name}:')
    a('s_cmp_ge_u32 s2, 256')
    a(f's_cbranch_scc1 L_end_{name}')
    a('s_load_dwordx2 s[4:5], s[0:1], 96')
    a('s_load_dwordx4 s[16:19], s[0:1], 0')
    a('s_load_dwordx4 s[20:23], s[0:1], 32')
    a('s_load_dwordx2 s[32:33], s[0:1], 48')
    if stamp:
        a('s_load_dwordx2 s[60:61], s[0:1], 88')
        a('s_memtime s[62:63]')
    a(f'v_lshrrev_b32 {v(T0)}, 6, v0')
    a(f'v_and_b32 {v(V_LANE)}, 63, v0')
    a(f'v_readfirstlane_b32 s10, {v(T0)}')
    a('s_and_b32 s12, s2, 7')
    a('s_lshr_b32 s13, s2, 3')
    a('s_lshr_b32 s14, s12, 1')
    a('s_lshl_b32 s14, s14, 2')
    a('s_and_b32 s15, s13, 3')
    a('s_add_u32 s8, s14, s15')
    a('s_and_b32 s14, s12, 1')
    a('s_lshl_b32 s14, s14, 3')
    a('s_lshr_b32 s15, s13, 2')
    a('s_add_u32 s9, s14, s15')
    a('s_and_b32 s11, s9, 1')
    a('s_lshl_b32 s11, s11, 3')
    a('s_mov_b32 s39, 1152')
    a('s_waitcnt lgkmcnt(0)')
    a(f's_mov_b32 s6, {WS_END}')
    a('s_mov_b32 s7, 0x20000')
    a('s_mov_b32 s44, s16\ns_mov_b32 s45, s17\ns_mov_b32 s46, %d\ns_mov_b32 s47, 0x20000' % (2048*1152))
    a('s_mov_b32 s48, s18\ns_mov_b32 s49, s19\ns_mov_b32 s50, %d\ns_mov_b32 s51, 0x20000' % (576*3456))
    a('s_mov_b32 s24, s20\ns_mov_b32 s25, s21\ns_mov_b32 s26, %d\ns_mov_b32 s27, 0x20000' % (2048*1152))
    a('s_mov_b32 s28, s22\ns_mov_b32 s29, s23\ns_mov_b32 s30, %d\ns_mov_b32 s31, 0x20000' % (2048*1152))
    a('s_mov_b32 s34, %d\ns_mov_b32 s35, 0x20000' % (576*8))
    a('s_cmp_ge_u32 s10, 4')
    a(f's_cbranch_scc1 L_prod_{name}')
    if do_prep: emit_prep(a, name)
    a(f'v_and_b32 {v(T0)}, 15, {v(V_LANE)}')
    a(f'v_lshrrev_b32 {v(T1)}, 4, {v(V_LANE)}')
    a(f'v_and_b32 {v(T2)}, 7, {v(V_LANE)}')
    a(f'v_xor_b32 {v(T2)}, {v(T2)}, {v(T1)}')
    a(f's_lshl_b32 s14, s10, 12')
    a(f'v_lshl_add_u32 {v(AX0)}, {v(T0)}, 7, s14')
    a(f'v_lshl_add_u32 {v(AX0)}, {v(T2)}, 4, {v(AX0)}')
    a(f'v_xor_b32 {v(AX1)}, 64, {v(AX0)}')
    a(f'v_lshrrev_b32 {v(T2)}, 2, {v(T0)}')
    a(f'v_and_b32 {v(T3)}, 1, {v(T1)}')
    a(f'v_lshl_add_u32 {v(T2)}, {v(T2)}, 1, {v(T3)}')
    a(f'v_mul_u32_u24 {v(T2)}, 2080, {v(T2)}')
    a(f'v_lshrrev_b32 {v(T3)}, 1, {v(T1)}')
    a(f'v_lshl_add_u32 {v(T2)}, {v(T3)}, 9, {v(T2)}')
    a(f's_add_u32 s14, s11, {WOFF}')
    a(f'v_add_u32 {v(T2)}, s14, {v(T2)}')
    a(f'v_and_b32 {v(T3)}, 3, {v(V_LANE)}')
    a(f'v_lshl_add_u32 {v(AW)}, {v(T3)}, 3, {v(T2)}')
    a(f'v_min_u32 {v(T4)}, 2, {v(T3)}')
    a(f'v_mul_u32_u24 {v(T4)}, 80, {v(T4)}')
    a(f'v_add3_u32 {v(AWH)}, {v(T2)}, {v(T4)}, 32')
    for r in range(56): a(f'v_mov_b32 {v(ACC+r)}, 0')
    a('s_mov_b32 s52, 0')
    a('s_mov_b32 s53, 0')
    a(f'L_cloop_{name}:')
    a('s_barrier')
    if stamp:
        a('s_cmp_eq_u32 s52, 0')
        a(f's_cbranch_scc0 L_nost_{name}')
        a('s_memtime s[64:65]')
        a(f'L_nost_{name}:')
    a(f'v_add_u32 {v(CX0)}, s53, {v(AX0)}')
    a(f'v_add_u32 {v(CX1)}, s53, {v(AX1)}')
    a(f'v_add_u32 {v(CW)}, s53, {v(AW)}')
    a(f'v_add_u32 {v(CWH)}, s53, {v(AWH)}')
    def xf(tt, ks): return XF + 4*(2*ks+tt)
    def wread(step):
        ks, f = divmod(step, 7)
        slot = WF + 4*(step % 4)
        for e in range(2):
            if f < 6: a(f'ds_read_b64_tr_b16 {v(slot+2*e,2)}, {v(CW)} offset:{e*256+ks*1024+f*40}')
            else:     a(f'ds_read_b64_tr_b16 {v(slot+2*e,2)}, {v(CWH)} offset:{e*256+ks*1024}')
    a(f'ds_read_b128 {v(xf(0,0),4)}, {v(CX0)}')
    a(f'ds_read_b128 {v(xf(1,0),4)}, {v(CX0)} offset:2048')
    wread(0); wread(1)
    a(f'ds_read_b128 {v(xf(0,1),4)}, {v(CX1)}')
    a(f'ds_read_b128 {v(xf(1,1),4)}, {v(CX1)} offset:2048')
    wread(2)
    waits = [8,8]+[6]*9+[4,2,0]
    for step in range(14):
        ks, f = divmod(step, 7)
        if step+3 < 14: wread(step+3)
        a(f's_waitcnt lgkmcnt({waits[step]})')
        slot = WF + 4*(step % 4)
        for tt in range(2):
            acc = ACC + 4*(2*f+tt)
            if f in (4,5): a(f'v_mfma_f32_16x16x32_bf16 {v(acc,4)}, {v(xf(tt,ks),4)}, {v(slot,4)}, {v(acc,4)}')
            else:          a(f'v_mfma_f32_16x16x32_bf16 {v(acc,4)}, {v(slot,4)}, {v(xf(tt,ks),4)}, {v(acc,4)}')
    a(f's_add_u32 s53, s53, {STAGE}')
    a(f's_cmp_eq_u32 s53, {4*STAGE}')
    a(f's_cselect_b32 s53, 0, s53')
    a('s_add_u32 s52, s52, 1')
    a('s_cmp_lt_u32 s52, 9')
    a(f's_cbranch_scc1 L_cloop_{name}')
    if stamp: a('s_memtime s[66:67]')
    acc = lambda f, tt: ACC + 4*(2*f+tt)
    a('s_nop 7')
    a(f'v_and_b32 {v(T0)}, 15, {v(V_LANE)}')
    a(f'v_lshrrev_b32 {v(T1)}, 4, {v(V_LANE)}')
    a('s_lshl_b32 s14, s8, 2')
    a('s_add_u32 s14, s14, s10')
    a('s_lshl_b32 s15, s9, 1')
    a(f'v_lshrrev_b32 {v(T2)}, 1, {v(T1)}')
    a(f'v_lshlrev_b32 {v(T2)}, 9, {v(T2)}')
    a(f'v_lshl_add_u32 {v(T2)}, {v(T0)}, 4, {v(T2)}')
    a(f'v_and_b32 {v(T3)}, 1, {v(T1)}')
    a(f'v_lshl_add_u32 {v(T2)}, {v(T3)}, 3, {v(T2)}')
    a(f'v_lshrrev_b32 {v(T4)}, 1, {v(T1)}')
    a(f'v_mul_u32_u24 {v(T4)}, 320, {v(T4)}')
    a(f'v_lshl_add_u32 {v(T4)}, {v(T0)}, 4, {v(T4)}')
    a(f'v_lshl_add_u32 {v(T4)}, {v(T3)}, 3, {v(T4)}')
    a(f's_mul_i32 s54, s15, {KV_HEAD}')
    a(f's_mul_i32 s56, s14, {TILE_B}')
    a('s_add_u32 s54, s54, s56')
    if KV_OFF: a(f's_add_u32 s54, s54, {KV_OFF}')
    a(f's_add_u32 s55, s54, {KV_HEAD}')
    a('s_lshl_b32 s56, s15, 16')
    a('s_lshl_b32 s57, s14, 10')
    a('s_add_u32 s56, s56, s57')
    a(f's_add_u32 s56, s56, {QLO_OFF}')
    a('s_add_u32 s57, s56, 65536')
    a(f's_mov_b32 s58, {CS_BITS}')
    NA=32; P=40
    for hb in range(2):
        for tt in range(2):
            r = acc(2+hb, tt); d = NA + 2*hb + tt
            a(f'v_mul_f32 {v(d)}, {v(r)}, {v(r)}')
            for j in range(1,4): a(f'v_fmac_f32 {v(d)}, {v(r+j)}, {v(r+j)}')
    a(f'v_cmp_eq_u32 vcc, 1, {v(T1)}')
    for hb in range(2):
        for tt in range(2):
            r = acc(6, tt) + 2*hb; d = NA + 2*hb + tt
            a(f'v_mul_f32 {v(P)}, {v(r)}, {v(r)}')
            a(f'v_fmac_f32 {v(P)}, {v(r+1)}, {v(r+1)}')
            a(f'v_cndmask_b32 {v(P)}, 0, {v(P)}, vcc')
            a(f'v_add_f32 {v(d)}, {v(d)}, {v(P)}')
    for d in range(NA, NA+4):
        a(f'v_mov_b32 {v(P)}, {v(d)}')
        a('s_nop 1')
        a(f'v_permlane16_swap_b32 {v(d)}, {v(P)}')
        a('s_nop 1')
        a(f'v_add_f32 {v(d)}, {v(d)}, {v(P)}')
        a(f'v_mov_b32 {v(P)}, {v(d)}')
        a('s_nop 1')
        a(f'v_permlane32_swap_b32 {v(d)}, {v(P)}')
        a('s_nop 1')
        a(f'v_add_f32 {v(d)}, {v(d)}, {v(P)}')
    for hb in range(2):
        d = NA + 2*hb
        a(f'v_max_f32 {v(d)}, {v(d)}, {v(d+1)}')
        for sh in (8,4,2,1):
            a('s_nop 1')
            a(f'v_max_f32_dpp {v(d)}, {v(d)}, {v(d)} row_ror:{sh} row_mask:0xf bank_mask:0xf')
    a(f'v_cmp_eq_u32 vcc, 1, {v(V_LANE)}')
    a(f'v_lshlrev_b32 {v(P+1)}, 8, {v(V_LANE)}')
    a(f's_lshl_b32 s59, s15, 8')
    a(f'v_cndmask_b32 {v(P)}, {v(NA)}, {v(NA+2)}, vcc')
    a(f's_lshl_b32 s42, s14, 2')
    a(f's_add_u32 s59, s59, s42')
    a(f's_add_u32 s59, s59, {NRM_OFF}')
    a(f'v_cmp_gt_u32 vcc, 2, {v(V_LANE)}')
    a('s_and_saveexec_b64 s[40:41], vcc')
    a(f'buffer_store_dword {v(P)}, {v(P+1)}, s[4:7], s59 offen')
    a('s_mov_b64 exec, s[40:41]')
    PK=44
    n=0
    for f, base, scale in ((0,'s56',True),(1,'s57',True),(2,'s54',False),(3,'s55',False)):
        for tt in range(2):
            r = acc(f,tt); d = PK + 2*(n % 4); n += 1
            if scale:
                for j in range(4): a(f'v_mul_f32 {v(r+j)}, s58, {v(r+j)}')
            a(f'v_cvt_pk_bf16_f32 {v(d)}, {v(r)}, {v(r+1)}')
            a(f'v_cvt_pk_bf16_f32 {v(d+1)}, {v(r+2)}, {v(r+3)}')
            a(f'buffer_store_dwordx2 {v(d,2)}, {v(T2)}, s[4:7], {base} offen offset:{tt*256}')
    for f, base in ((4,'s54'),(5,'s55')):
        for tt in range(2):
            r = acc(f,tt); d = PK + 2*(n % 4); n += 1
            a(f'v_cvt_pk_bf16_f32 {v(d)}, {v(r)}, {v(r+1)}')
            a(f'v_cvt_pk_bf16_f32 {v(d+1)}, {v(r+2)}, {v(r+3)}')
            a(f'buffer_store_dwordx2 {v(d,2)}, {v(T4)}, s[4:7], {base} offen offset:{V_O+tt*640}')
    a('s_lshl_b32 s56, s15, 13')
    a('s_lshl_b32 s57, s14, 7')
    a('s_add_u32 s56, s56, s57')
    a(f's_add_u32 s56, s56, {QHI_OFF}')
    a('s_add_u32 s57, s56, 8192')
    a(f'v_lshlrev_b32 {v(T5)}, 2, {v(T0)}')
    HP=52
    a(f'v_cmp_eq_u32 vcc, 0, {v(T1)}')
    a(f'v_mov_b32 {v(P)}, 1.0')
    a(f'v_mov_b32 {v(P+1)}, s58')
    a(f'v_cndmask_b32 {v(P)}, {v(P)}, {v(P+1)}, vcc')
    for tt in range(2):
        r = acc(6,tt)
        for j in range(4): a(f'v_mul_f32 {v(r+j)}, {v(P)}, {v(r+j)}')
        a(f'v_cvt_pk_bf16_f32 {v(HP+2*tt)}, {v(r)}, {v(r+1)}')
        a(f'v_cvt_pk_bf16_f32 {v(HP+2*tt+1)}, {v(r+2)}, {v(r+3)}')
    a('s_and_saveexec_b64 s[40:41], vcc')
    for tt in range(2):
        a(f'buffer_store_dword {v(HP+2*tt)}, {v(T5)}, s[4:7], s56 offen offset:{tt*64}')
        a(f'buffer_store_dword {v(HP+2*tt+1)}, {v(T5)}, s[4:7], s57 offen offset:{tt*64}')
    a('s_mov_b64 exec, s[40:41]')
    a(f'v_cmp_eq_u32 vcc, 1, {v(T1)}')
    a('s_and_saveexec_b64 s[40:41], vcc')
    for tt in range(2):
        a(f'buffer_store_dword {v(HP+2*tt)}, {v(T5)}, s[4:7], s54 offen offset:{KHI_O+tt*64}')
        a(f'buffer_store_dword {v(HP+2*tt+1)}, {v(T5)}, s[4:7], s55 offen offset:{KHI_O+tt*64}')
    a('s_mov_b64 exec, s[40:41]')
    a(f'v_lshrrev_b32 {v(T5)}, 3, {v(T0)}')
    a(f'v_mul_u32_u24 {v(T5)}, 320, {v(T5)}')
    a(f'v_and_b32 {v(P)}, 7, {v(T0)}')
    a(f'v_lshl_add_u32 {v(T5)}, {v(P)}, 1, {v(T5)}')
    a(f'v_cmp_eq_u32 vcc, 2, {v(T1)}')
    a('s_and_saveexec_b64 s[40:41], vcc')
    for tt in range(2):
        o = V_O + tt*640 + 256
        a(f'buffer_store_short {v(HP+2*tt)}, {v(T5)}, s[4:7], s54 offen offset:{o}')
        a(f'buffer_store_short_d16_hi {v(HP+2*tt)}, {v(T5)}, s[4:7], s54 offen offset:{o+16}')
        a(f'buffer_store_short {v(HP+2*tt+1)}, {v(T5)}, s[4:7], s55 offen offset:{o}')
        a(f'buffer_store_short_d16_hi {v(HP+2*tt+1)}, {v(T5)}, s[4:7], s55 offen offset:{o+16}')
    a('s_mov_b64 exec, s[40:41]')
    a(f'v_and_b32 {v(P)}, 1, {v(V_LANE)}')
    a(f'v_cmp_eq_u32 vcc, 0, {v(P)}')
    a(f'v_lshlrev_b32 {v(T5)}, 4, {v(P)}')
    a(f'v_bfe_u32 {v(P+1)}, {v(V_LANE)}, 1, 1')
    a(f'v_mul_u32_u24 {v(P+1)}, 320, {v(P+1)}')
    a(f'v_add_u32 {v(T5)}, {v(T5)}, {v(P+1)}')
    a(f'v_bfe_u32 {v(P+1)}, {v(V_LANE)}, 2, 1')
    a(f'v_mul_u32_u24 {v(P+1)}, 640, {v(P+1)}')
    a(f'v_add_u32 {v(T5)}, {v(T5)}, {v(P+1)}')
    a(f'v_bfe_u32 {v(P+1)}, {v(V_LANE)}, 3, 1')
    a(f'v_mul_lo_u32 {v(P+1)}, {v(P+1)}, s43')
    a.l.pop()
    a(f's_mov_b32 s43, {KV_HEAD}')
    a(f'v_mul_lo_u32 {v(P+1)}, {v(P+1)}, s43')
    a(f'v_add_u32 {v(T5)}, {v(T5)}, {v(P+1)}')
    a(f'v_mov_b32 {v(P+2)}, 0x3f803f80')
    a(f'v_cndmask_b32 {v(P+4)}, 0, {v(P+2)}, vcc')
    for j in range(1,4): a(f'v_mov_b32 {v(P+4+j)}, {v(P+4)}')
    a(f'v_cmp_gt_u32 vcc, 16, {v(V_LANE)}')
    a('s_and_saveexec_b64 s[40:41], vcc')
    a(f'buffer_store_dwordx4 {v(P+4,4)}, {v(T5)}, s[4:7], s54 offen offset:{V_O+288}')
    a('s_mov_b64 exec, s[40:41]')
    if stamp:
        a('s_waitcnt vmcnt(0)')
        a('s_memtime s[68:69]')
        a('s_waitcnt lgkmcnt(0)')
        a('s_sub_u32 s64, s64, s62\ns_sub_u32 s66, s66, s62\ns_sub_u32 s68, s68, s62')
        a('s_cmp_eq_u32 s2, 0')
        a(f's_cbranch_scc0 L_end_{name}')
        a(f'v_mov_b32 {v(T0)}, s64\nv_mov_b32 {v(T1)}, s66\nv_mov_b32 {v(T2)}, s68')
        a(f's_lshl_b32 s14, s10, 4')
        a(f'v_mov_b32 {v(T3)}, s14')
        a(f'v_cmp_eq_u32 vcc, 0, {v(V_LANE)}')
        a('s_and_saveexec_b64 s[40:41], vcc')
        a(f'global_store_dwordx3 {v(T3)}, {v(T0,3)}, s[60:61]')
    a(f's_branch L_end_{name}')
    a(f'L_prod_{name}:')
    a('s_sub_u32 s12, s10, 4')
    a(f'v_lshrrev_b32 {v(T0)}, 3, {v(V_LANE)}')
    a(f'v_and_b32 {v(T1)}, 7, {v(V_LANE)}')
    a(f'v_xor_b32 {v(T1)}, {v(T1)}, {v(T0)}')
    a(f'v_mul_u32_u24 {v(PX)}, 1152, {v(T0)}')
    a(f'v_lshl_add_u32 {v(PX)}, {v(T1)}, 4, {v(PX)}')
    a(f'v_lshrrev_b32 {v(T0)}, 4, {v(V_LANE)}')
    a(f'v_and_b32 {v(T1)}, 1, {v(T0)}')
    a(f'v_lshlrev_b32 {v(T1)}, 2, {v(T1)}')
    a(f'v_lshrrev_b32 {v(T0)}, 1, {v(T0)}')
    a(f'v_lshl_add_u32 {v(T0)}, {v(T0)}, 4, {v(T1)}')
    a(f'v_mul_u32_u24 {v(PW)}, 3456, {v(T0)}')
    a(f'v_and_b32 {v(T0)}, 15, {v(V_LANE)}')
    a(f'v_min_u32 {v(T0)}, 14, {v(T0)}')
    a(f'v_mul_u32_u24 {v(T1)}, 52, {v(T0)}')
    a(f'v_lshrrev_b32 {v(T1)}, 8, {v(T1)}')
    a(f'v_mul_u32_u24 {v(T2)}, 5, {v(T1)}')
    a(f'v_sub_u32 {v(T2)}, {v(T0)}, {v(T2)}')
    a(f'v_mul_u32_u24 {v(T1)}, 1152, {v(T1)}')
    a(f'v_lshl_add_u32 {v(T1)}, {v(T2)}, 4, {v(T1)}')
    a(f'v_add_u32 {v(PW)}, {v(PW)}, {v(T1)}')
    a(f's_mul_i32 s54, s8, {128*1152}')
    a(f's_mul_i32 s14, s12, {4*9216}')
    a('s_add_u32 s54, s54, s14')
    a(f's_mul_i32 s55, s12, 3456')
    a(f's_mul_i32 s14, s9, 72')
    a('s_add_u32 s55, s55, s14')
    a('s_sub_u32 s55, s55, s11')
    a('s_lshl_b32 s56, s12, 12')
    a(f's_mul_i32 s57, s12, {2*2080}')
    a(f's_add_u32 s57, s57, {WOFF}')
    a('s_mov_b32 s53, 0')
    def issue(a, tag):
        for i in range(4):
            a(f's_add_u32 s14, s53, s56')
            a(f's_add_u32 m0, s14, {i*1024}')
            a(f's_add_u32 s15, s54, {i*9216}')
            a(f'buffer_load_dwordx4 {v(PX)}, s[44:47], s15 offen lds')
        for b in range(2):
            for u in range(2):
                a(f's_add_u32 s14, s53, s57')
                a(f's_add_u32 m0, s14, {b*2080+u*1024}')
                a(f's_add_u32 s15, s55, {(8*b+32*u)*3456}')
                a(f'buffer_load_dwordx4 {v(PW)}, s[48:51], s15 offen lds')
        a(f's_add_u32 s54, s54, 128')
        a(f's_add_u32 s55, s55, {64*3456}')
        a(f's_add_u32 s53, s53, {STAGE}')
        a(f's_cmp_eq_u32 s53, {4*STAGE}')
        a(f's_cselect_b32 s53, 0, s53')
    a('s_mov_b32 s52, 0')
    a(f'L_pinit_{name}:')
    issue(a, 'i')
    a('s_add_u32 s52, s52, 1')
    a('s_cmp_lt_u32 s52, 4')
    a(f's_cbranch_scc1 L_pinit_{name}')
    a('s_waitcnt vmcnt(24)')
    a('s_barrier')
    a('s_waitcnt vmcnt(16)')
    a(f'L_ploop_{name}:')
    a('s_barrier')
    issue(a, 'l')
    a('s_waitcnt vmcnt(16)')
    a('s_add_u32 s52, s52, 1')
    a('s_cmp_lt_u32 s52, 9')
    a(f's_cbranch_scc1 L_ploop_{name}')
    a('s_barrier')
    a('s_waitcnt vmcnt(8)')
    a('s_barrier')
    a('s_waitcnt vmcnt(0)')
    a('s_barrier')
    a(f'L_end_{name}:')
    a('s_endpgm')
    return a.text()

if __name__ == '__main__':
    import sys
    name = 'qkv_kernel'
    txt = HEADER + f'; @launch kernel={name} grid=(256,1,1) block=(512,1,1) lds=163840\n'
    txt += '.amdgcn_target "amdgcn-amd-amdhsa--gfx950"\n.text\n'
    txt += emit_qkv_kernel(name, do_prep=(len(sys.argv)<3), stamp=True)
    txt += '.section .rodata,"a"\n' + kd(name, NV_QKV)
    open(sys.argv[1], 'w').write(txt)
```

```python
import sys
from asmb import *
from layout import *
import qkv, conv, attn, outp
src = qkv.emit_qkv_kernel('qkv_kernel', stamp=False)
a = Asm()
a("s_load_dwordx2 s[44:45], s[0:1], 16")
a("s_waitcnt lgkmcnt(0)")
a(f"s_mov_b32 s46, {576*1152}\ns_mov_b32 s47, 0x20000")
a("s_cmp_ge_u32 s12, 3")
a("s_cbranch_scc1 L_end_qkv_kernel")
outp.emit_wof(a, 'qkv_kernel', 's12')
marker = "    s_barrier\nL_end_qkv_kernel:"
assert src.count(marker) == 1
src = src.replace(marker, "    s_barrier\n" + a.text() + "L_end_qkv_kernel:")
txt = HEADER
for k in ('qkv_kernel','conv_kernel','attn_kernel','out_kernel'):
    txt += f'; @launch kernel={k} grid=(256,1,1) block=(512,1,1) lds=163840\n'
txt += '.amdgcn_target "amdgcn-amd-amdhsa--gfx950"\n.text\n'
attn.PRIO = 6
txt += src + conv.emit_conv_kernel('conv_kernel') + attn.emit_attn_kernel('attn_kernel') + outp.emit_out_kernel('out_kernel')
txt += '.section .rodata,"a"\n' + kd('qkv_kernel', qkv.NV_QKV) + kd('conv_kernel', conv.NV_CONV) + kd('attn_kernel', attn.NV_ATTN) + kd('out_kernel', outp.NV_OUT)
open(sys.argv[1], 'w').write(txt)
```

```python
S=2048; D=576; H=32; DH=18
TILE_B = 2432
KLO_O, KHI_O, V_O = 0, 1024, 1152
KV_HEAD = 64*TILE_B
KV_OFF  = 0
QLO_OFF = 0x500000
QHI_OFF = QLO_OFF + 32*65536
NRM_OFF = QHI_OFF + 32*8192
G_OFF   = NRM_OFF + 8192
UR_OFF  = G_OFF + 8192
Y_OFF   = UR_OFF + 576*4096
OLO_OFF = Y_OFF + 576*4096
OHI_OFF = OLO_OFF + 32*65536
WOF_OFF = OHI_OFF + 2048*128
FLAG_OFF = WOF_OFF + 576*576*2
F0_OFF = FLAG_OFF
F1_OFF = F0_OFF + 1024
F2_OFF = F1_OFF + 1024
F3_OFF = F2_OFF + 1024
EPOCH_OFF = F3_OFF + 1024
WS_END  = FLAG_OFF + 262144
CSCALE = 1.4426950408889634 / (18 ** 0.5)
def lo_dims(h):
    return (list(range(16)), [16,17]) if h % 2 == 0 else (list(range(2,18)), [0,1])
if __name__ == '__main__':
    for k,v in list(globals().items()):
        if k.endswith('_OFF') or k.endswith('END'): print(k, hex(v))
DBG_OFF = FLAG_OFF + 8192
```

```python
from asmb import *
from layout import *
TIMEOUT = 20000
_n = [0]
def emit_flag(a, off_expr_sreg):
    _n[0] += 1
    lab = f'L_flag{_n[0]}'
    a('s_cmp_eq_u32 s10, 0')
    a(f's_cbranch_scc0 {lab}')
    a('v_mov_b32 v2, s3')
    a('v_mov_b32 v3, 0')
    a('s_mov_b64 s[40:41], exec')
    a('s_mov_b64 exec, 1')
    a(f'buffer_store_dword v2, v3, s[4:7], {off_expr_sreg} offen sc1')
    a('s_mov_b64 exec, s[40:41]')
    a(f'{lab}:')
def emit_poll(a, off_sreg, nlanes, wide=1, wave=0):
    _n[0] += 1
    lab = f'L_poll{_n[0]}'
    a(f's_cmp_eq_u32 s10, {wave}')
    a(f's_cbranch_scc0 {lab}_e')
    a(f'v_lshlrev_b32 v2, {2 if wide==1 else 4}, v1')
    a('s_mov_b64 s[40:41], exec')
    if nlanes < 64: a(f's_mov_b64 exec, {hex((1<<nlanes)-1)}')
    a(f's_mov_b32 s42, {TIMEOUT}')
    a(f'{lab}:')
    if wide == 1:
        a(f'buffer_load_dword v4, v2, s[4:7], {off_sreg} offen sc1')
        a('s_waitcnt vmcnt(0)')
        a('v_cmp_ne_u32 vcc, s3, v4')
    else:
        a(f'buffer_load_dwordx4 v[4:7], v2, s[4:7], {off_sreg} offen sc1')
        a('s_waitcnt vmcnt(0)')
        a('v_xor_b32 v4, s3, v4\nv_xor_b32 v5, s3, v5\nv_xor_b32 v6, s3, v6\nv_xor_b32 v7, s3, v7')
        a('v_or3_b32 v4, v4, v5, v6\nv_or_b32 v4, v4, v7')
        a('v_cmp_ne_u32 vcc, 0, v4')
    a('s_nop 3')
    a('s_cmp_eq_u64 vcc, 0')
    a(f's_cbranch_scc1 {lab}_d')
    a('s_sub_u32 s42, s42, 1')
    a('s_cmp_lg_u32 s42, 0')
    a(f's_cbranch_scc1 {lab}')
    a(f'{lab}_d:')
    a('s_mov_b64 exec, s[40:41]')
    a(f'{lab}_e:')
```

```python
from asmb import *
from layout import *
P_X, P_WQKV, P_WO, P_Q, P_K, P_V, P_SHIFT, P_SSMK, P_D, P_GATE, P_OUT, P_DBG, P_WS = [64+2*i for i in range(13)]
class Ctx:
    stamp = False
    sc1 = True
    sl = False
    oob15 = False
    nstamp = 0
ctx = Ctx()
def SC(): return ' sc1' if ctx.sc1 else ''
def SL(): return ' sc1' if ctx.sl else ''
def srd(a, d, ptr, size):
    a(f's_mov_b32 s{d}, s{ptr}\ns_mov_b32 s{d+1}, s{ptr+1}\ns_mov_b32 s{d+2}, {size}\ns_mov_b32 s{d+3}, 0x20000')
STAMP_V = 255
STAMPS = {}
def _slot(name):
    if name not in STAMPS: STAMPS[name] = len(STAMPS)
    assert STAMPS[name] < 62
    return STAMPS[name]
def stamp(a, name):
    if not ctx.stamp: return
    i = _slot(name)
    a('s_memtime s[94:95]')
    a('s_waitcnt lgkmcnt(0)')
    a(f'v_writelane_b32 v{STAMP_V}, s94, {i}')
def stamp_rt(a, i):
    if not ctx.stamp: return
    a('s_memrealtime s[94:95]')
    a('s_waitcnt lgkmcnt(0)')
    a(f'v_writelane_b32 v{STAMP_V}, s94, {i}')
def stamp_dump(a):
    if not ctx.stamp: return
    a('s_and_b32 s94, s10, 3')
    a('s_cmp_eq_u32 s94, 0')
    a('s_cbranch_scc0 L_nodump')
    a('s_lshr_b32 s94, s10, 2')
    a('s_lshl_b32 s95, s2, 1')
    a('s_add_u32 s94, s94, s95')
    a('s_lshl_b32 s94, s94, 8')
    a(f's_add_u32 s94, s94, {DBG_OFF}')
    a('v_lshlrev_b32 v2, 2, v1')
    a(f'buffer_store_dword v{STAMP_V}, v2, s[4:7], s94 offen')
    a('L_nodump:')
```

```python
from common import *
from syncp import emit_flag
import struct
STAGE = 33024; WOFF = 16384
V_LANE=1; T0=2; T1=3; T2=4; T3=5; T4=6; T5=7
AX0=8; AX1=9; AW=10; AWH=11; CX0=12; CX1=13; CW=14; CWH=15
PX=16; PW=17
XF=32; WF=48; ACC=64
CS_BITS = struct.unpack('<I', struct.pack('<f', CSCALE))[0]

def emit_prep(a):
    K0=32; V0=56; TP=72
    srd(a, 24, P_K, 2048*1152); srd(a, 28, P_V, 2048*1152); srd(a, 32, P_SHIFT, 576*8)
    a('s_mov_b32 s39, 1152')
    a(f's_lshr_b32 s36, s2, 2')
    a(f's_and_b32 s37, s2, 3')
    a(f's_mul_i32 s38, s10, 36')
    a(f'v_add_u32 {v(T0)}, s38, {v(V_LANE)}')
    a(f'v_lshrrev_b32 {v(T1)}, 2, {v(T0)}')
    a(f'v_and_b32 {v(T2)}, 3, {v(T0)}')
    a(f's_lshl_b32 s38, s36, 5')
    a(f's_sub_u32 s38, s38, 3')
    a(f'v_lshl_add_u32 {v(T3)}, {v(T2)}, 3, s38')
    a(f'v_mul_lo_u32 {v(T3)}, {v(T3)}, s39')
    a(f's_mul_i32 s38, s37, 288')
    a(f'v_lshl_add_u32 {v(T4)}, {v(T1)}, 3, s38')
    a(f'v_add_u32 {v(T3)}, {v(T3)}, {v(T4)}')
    a(f'v_add_u32 {v(T5)}, 3456, {v(T3)}')
    a(f'v_lshlrev_b32 {v(T4)}, 2, {v(T4)}')
    a(f'v_cmp_gt_u32 vcc, 36, {v(V_LANE)}')
    a(f's_and_saveexec_b64 s[40:41], vcc')
    for r in range(11):
        if r and r % 3 == 0: a(f'v_add_u32 {v(T3)}, 3456, {v(T3)}')
        a(f'buffer_load_dwordx2 {v(K0+2*r,2)}, {v(T3)}, s[24:27], 0 offen offset:{(r%3)*1152}')
    for r in range(8):
        if r and r % 3 == 0: a(f'v_add_u32 {v(T5)}, 3456, {v(T5)}')
        a(f'buffer_load_dwordx2 {v(V0+2*r,2)}, {v(T5)}, s[28:31], 0 offen offset:{(r%3)*1152}')
    a(f'buffer_load_dwordx4 {v(TP,4)}, {v(T4)}, s[32:35], 0 offen')
    a(f'buffer_load_dwordx4 {v(TP+4,4)}, {v(T4)}, s[32:35], 0 offen offset:16')
    a(f's_lshl_b32 s38, s36, 2')
    a(f's_add_u32 s38, s38, s37')
    a(f's_mul_i32 s38, s38, 9216')
    a(f's_add_u32 s38, s38, {UR_OFF}')
    a(f'v_sub_u32 {v(T2)}, 3, {v(T2)}')
    a(f'v_lshlrev_b32 {v(T2)}, 4, {v(T2)}')
    a(f'v_lshl_add_u32 {v(T2)}, {v(T1)}, 8, {v(T2)}')
    stamp(a, 'prep_issued')
    a('s_waitcnt vmcnt(0)')
    stamp(a, 'prep_data')
    W=80; KF=88; O=110
    for d in range(2):
        for j in range(4):
            for c in range(2):
                src = TP + 4*d + 2*c + (j >> 1)
                if j & 1: a(f'v_and_b32 {v(W+2*j+c)}, 0xffff0000, {v(src)}')
                else: a(f'v_lshlrev_b32 {v(W+2*j+c)}, 16, {v(src)}')
        for r in range(11):
            a(f'v_lshlrev_b32 {v(KF+2*r)}, 16, {v(K0+2*r+d)}')
            a(f'v_and_b32 {v(KF+2*r+1)}, 0xffff0000, {v(K0+2*r+d)}')
        for t in range(8):
            a(f'v_pk_mul_f32 {v(O+2*t,2)}, {v(W,2)}, {v(KF+2*(t+3),2)}')
            for j in range(1,4): a(f'v_pk_fma_f32 {v(O+2*t,2)}, {v(W+2*j,2)}, {v(KF+2*(t+3-j),2)}, {v(O+2*t,2)}')
        for t in range(8):
            a(f'v_lshlrev_b32 {v(KF+2*t)}, 16, {v(V0+2*t+d)}')
            a(f'v_and_b32 {v(KF+2*t+1)}, 0xffff0000, {v(V0+2*t+d)}')
        for t in range(8): a(f'v_pk_mul_f32 {v(O+2*t,2)}, {v(O+2*t,2)}, {v(KF+2*t,2)}')
        for c in range(2):
            dst = 16 + 4*c
            for p in range(4): a(f'v_cvt_pk_bf16_f32 {v(dst+p)}, {v(O+2*(7-2*p)+c)}, {v(O+2*(6-2*p)+c)}')
            a(f'buffer_store_dwordx4 {v(dst,4)}, {v(T2)}, s[4:7], s38 offen offset:{(2*d+c)*64}{SC()}')
        if d == 0: a('s_nop 1')
    a(f's_mov_b64 exec, s[40:41]')

def emit_wof(a, m_sreg):
    srd(a, 44, P_WO, 576*1152)
    a(f's_lshl_b32 s14, {m_sreg}, 8')
    a('s_add_u32 s14, s14, s2')
    a('s_cmp_ge_u32 s14, 648')
    a(f's_cbranch_scc1 L_wofend')
    a('s_mul_i32 s15, s14, 1821')
    a('s_lshr_b32 s15, s15, 16')
    a('s_mul_i32 s16, s15, 36')
    a('s_sub_u32 s16, s14, s16')
    a(f'v_and_b32 {v(T0)}, 15, {v(V_LANE)}')
    a(f'v_lshrrev_b32 {v(T1)}, 4, {v(V_LANE)}')
    a(f'v_lshrrev_b32 {v(T2)}, 1, {v(T1)}')
    a(f'v_mul_u32_u24 {v(T2)}, 20, {v(T2)}')
    a(f'v_and_b32 {v(T3)}, 1, {v(T1)}')
    a(f'v_lshl_add_u32 {v(T2)}, {v(T3)}, 3, {v(T2)}')
    a(f'v_mul_u32_u24 {v(T3)}, 72, {v(T1)}')
    a('s_mul_i32 s17, s15, 36')
    a('s_sub_u32 s18, s15, 16')
    a('s_mul_i32 s18, s18, 288')
    a('s_cmp_lt_u32 s15, 16')
    a('s_cselect_b64 vcc, -1, 0')
    a('s_cselect_b32 s17, s17, s18')
    a(f'v_cndmask_b32 {v(T2)}, {v(T3)}, {v(T2)}, vcc')
    a(f'v_add_u32 {v(T2)}, s17, {v(T2)}')
    a(f'v_mul_u32_u24 {v(T2)}, 1152, {v(T2)}')
    a(f's_lshl_b32 s16, s16, 5')
    a(f'v_lshl_add_u32 {v(T2)}, {v(T0)}, 1, {v(T2)}')
    a(f'v_add_u32 {v(T2)}, s16, {v(T2)}')
    lo = [0,1,2,3,4,5,6,7]; hi = [16,17,18,19,52,53,54,55]
    a('s_cmp_lt_u32 s15, 16')
    for j in range(8):
        a(f's_movk_i32 s19, {lo[j]*1152}')
        a(f's_cselect_b32 s18, s19, {hi[j]*1152}')
        a(f'buffer_load_ushort {v(12+j)}, {v(T2)}, s[44:47], s18 offen')
    a(f's_lshl_b32 s14, s14, 10')
    a(f's_add_u32 s14, s14, {WOF_OFF}')
    a(f'v_lshlrev_b32 {v(T3)}, 4, {v(V_LANE)}')
    a('s_waitcnt vmcnt(0)')
    for p in range(4): a(f'v_lshl_or_b32 {v(8+p)}, {v(13+2*p)}, 16, {v(12+2*p)}')
    a(f'buffer_store_dwordx4 {v(8,4)}, {v(T3)}, s[4:7], s14 offen{SC()}')
    a(f'L_wofend:')

def emit_phA(a):
    a('s_and_b32 s12, s2, 7')
    a('s_lshr_b32 s13, s2, 3')
    a('s_lshr_b32 s14, s12, 1')
    a('s_lshl_b32 s14, s14, 2')
    a('s_and_b32 s15, s13, 3')
    a('s_add_u32 s8, s14, s15')
    a('s_and_b32 s14, s12, 1')
    a('s_lshl_b32 s14, s14, 3')
    a('s_lshr_b32 s15, s13, 2')
    a('s_add_u32 s9, s14, s15')
    a('s_and_b32 s11, s9, 1')
    a('s_lshl_b32 s11, s11, 3')
    a('s_cmp_ge_u32 s10, 4')
    a(f's_cbranch_scc1 L_prod')
    stamp(a, 'c_entry')
    if not getattr(ctx,'noprep',False): emit_prep(a)
    stamp(a, 'prep_iss')
    a(f'v_and_b32 {v(T0)}, 15, {v(V_LANE)}')
    a(f'v_lshrrev_b32 {v(T1)}, 4, {v(V_LANE)}')
    a(f'v_and_b32 {v(T2)}, 7, {v(V_LANE)}')
    a(f'v_xor_b32 {v(T2)}, {v(T2)}, {v(T1)}')
    a(f's_lshl_b32 s14, s10, 12')
    a(f'v_lshl_add_u32 {v(AX0)}, {v(T0)}, 7, s14')
    a(f'v_lshl_add_u32 {v(AX0)}, {v(T2)}, 4, {v(AX0)}')
    a(f'v_xor_b32 {v(AX1)}, 64, {v(AX0)}')
    a(f'v_lshrrev_b32 {v(T2)}, 2, {v(T0)}')
    a(f'v_and_b32 {v(T3)}, 1, {v(T1)}')
    a(f'v_lshl_add_u32 {v(T2)}, {v(T2)}, 1, {v(T3)}')
    a(f'v_mul_u32_u24 {v(T2)}, 2080, {v(T2)}')
    a(f'v_lshrrev_b32 {v(T3)}, 1, {v(T1)}')
    a(f'v_lshl_add_u32 {v(T2)}, {v(T3)}, 9, {v(T2)}')
    a(f's_add_u32 s14, s11, {WOFF}')
    a(f'v_add_u32 {v(T2)}, s14, {v(T2)}')
    a(f'v_and_b32 {v(T3)}, 3, {v(V_LANE)}')
    a(f'v_lshl_add_u32 {v(AW)}, {v(T3)}, 3, {v(T2)}')
    a(f'v_min_u32 {v(T4)}, 2, {v(T3)}')
    a(f'v_mul_u32_u24 {v(T4)}, 80, {v(T4)}')
    a(f'v_add3_u32 {v(AWH)}, {v(T2)}, {v(T4)}, 32')
    for r in range(56): a(f'v_mov_b32 {v(ACC+r)}, 0')
    a('s_mov_b32 s52, 0')
    a('s_mov_b32 s53, 0')
    a(f'L_cloop:')
    a('s_waitcnt vmcnt(0)')
    a('s_barrier')
    a('s_cmp_eq_u32 s52, 2')
    a('s_cbranch_scc0 L_nof0')
    a('s_and_b32 s14, s2, 3')
    a('s_lshl_b32 s14, s14, 8')
    a('s_lshr_b32 s15, s2, 2')
    a('s_lshl_b32 s15, s15, 2')
    a('s_add_u32 s14, s14, s15')
    a(f's_add_u32 s14, s14, {F0_OFF}')
    emit_flag(a, 's14')
    a('L_nof0:')
    a(f'v_add_u32 {v(CX0)}, s53, {v(AX0)}')
    a(f'v_add_u32 {v(CX1)}, s53, {v(AX1)}')
    a(f'v_add_u32 {v(CW)}, s53, {v(AW)}')
    a(f'v_add_u32 {v(CWH)}, s53, {v(AWH)}')
    def xf(tt, ks): return XF + 4*(2*ks+tt)
    def wread(step):
        ks, f = divmod(step, 7)
        slot = WF + 4*(step % 4)
        for e in range(2):
            if f < 6: a(f'ds_read_b64_tr_b16 {v(slot+2*e,2)}, {v(CW)} offset:{e*256+ks*1024+f*40}')
            else:     a(f'ds_read_b64_tr_b16 {v(slot+2*e,2)}, {v(CWH)} offset:{e*256+ks*1024}')
    a(f'ds_read_b128 {v(xf(0,0),4)}, {v(CX0)}')
    a(f'ds_read_b128 {v(xf(1,0),4)}, {v(CX0)} offset:2048')
    wread(0); wread(1)
    a(f'ds_read_b128 {v(xf(0,1),4)}, {v(CX1)}')
    a(f'ds_read_b128 {v(xf(1,1),4)}, {v(CX1)} offset:2048')
    wread(2)
    waits = [8,8]+[6]*9+[4,2,0]
    for step in range(14):
        ks, f = divmod(step, 7)
        if step+3 < 14: wread(step+3)
        a(f's_waitcnt lgkmcnt({waits[step]})')
        slot = WF + 4*(step % 4)
        for tt in range(2):
            acc = ACC + 4*(2*f+tt)
            if f in (4,5): a(f'v_mfma_f32_16x16x32_bf16 {v(acc,4)}, {v(xf(tt,ks),4)}, {v(slot,4)}, {v(acc,4)}')
            else:          a(f'v_mfma_f32_16x16x32_bf16 {v(acc,4)}, {v(slot,4)}, {v(xf(tt,ks),4)}, {v(acc,4)}')
    a(f's_add_u32 s53, s53, {STAGE}')
    a(f's_cmp_eq_u32 s53, {4*STAGE}')
    a(f's_cselect_b32 s53, 0, s53')
    a('s_add_u32 s52, s52, 1')
    a('s_cmp_lt_u32 s52, 9')
    a(f's_cbranch_scc1 L_cloop')
    stamp(a, 'loop')
    acc = lambda f, tt: ACC + 4*(2*f+tt)
    a('s_nop 7')
    a(f'v_and_b32 {v(T0)}, 15, {v(V_LANE)}')
    a(f'v_lshrrev_b32 {v(T1)}, 4, {v(V_LANE)}')
    a('s_lshl_b32 s14, s8, 2')
    a('s_add_u32 s14, s14, s10')
    a('s_lshl_b32 s15, s9, 1')
    a(f'v_lshrrev_b32 {v(T2)}, 1, {v(T1)}')
    a(f'v_lshlrev_b32 {v(T2)}, 9, {v(T2)}')
    a(f'v_lshl_add_u32 {v(T2)}, {v(T0)}, 4, {v(T2)}')
    a(f'v_and_b32 {v(T3)}, 1, {v(T1)}')
    a(f'v_lshl_add_u32 {v(T2)}, {v(T3)}, 3, {v(T2)}')
    a(f'v_lshrrev_b32 {v(T4)}, 1, {v(T1)}')
    a(f'v_mul_u32_u24 {v(T4)}, 320, {v(T4)}')
    a(f'v_lshl_add_u32 {v(T4)}, {v(T0)}, 4, {v(T4)}')
    a(f'v_lshl_add_u32 {v(T4)}, {v(T3)}, 3, {v(T4)}')
    a(f's_mul_i32 s54, s15, {KV_HEAD}')
    a(f's_mul_i32 s56, s14, {TILE_B}')
    a('s_add_u32 s54, s54, s56')
    if KV_OFF: a(f's_add_u32 s54, s54, {KV_OFF}')
    a(f's_add_u32 s55, s54, {KV_HEAD}')
    a('s_lshl_b32 s56, s15, 16')
    a('s_lshl_b32 s57, s14, 10')
    a('s_add_u32 s56, s56, s57')
    a(f's_add_u32 s56, s56, {QLO_OFF}')
    a('s_add_u32 s57, s56, 65536')
    a(f's_mov_b32 s58, {CS_BITS}')
    PK=44
    n=0
    NA=32; P=40
    for hb in range(2):
        for tt in range(2):
            r = acc(2+hb, tt); d = NA + 2*hb + tt
            a(f'v_mul_f32 {v(d)}, {v(r)}, {v(r)}')
            for j in range(1,4): a(f'v_fmac_f32 {v(d)}, {v(r+j)}, {v(r+j)}')
    for f, base, scale in ((2,'s54',False),(3,'s55',False),(0,'s56',True),(1,'s57',True)):
        for tt in range(2):
            r = acc(f,tt); d = PK + 2*(n % 4); n += 1
            if scale:
                a(f'v_pk_mul_f32 {v(r,2)}, {v(r,2)}, s[58:59] op_sel_hi:[1,0]')
                a(f'v_pk_mul_f32 {v(r+2,2)}, {v(r+2,2)}, s[58:59] op_sel_hi:[1,0]')
            a(f'v_cvt_pk_bf16_f32 {v(d)}, {v(r)}, {v(r+1)}')
            a(f'v_cvt_pk_bf16_f32 {v(d+1)}, {v(r+2)}, {v(r+3)}')
            a(f'buffer_store_dwordx2 {v(d,2)}, {v(T2)}, s[4:7], {base} offen offset:{tt*256}{SC()}')
    for f, base in ((4,'s54'),(5,'s55')):
        for tt in range(2):
            r = acc(f,tt); d = PK + 2*(n % 4); n += 1
            a(f'v_cvt_pk_bf16_f32 {v(d)}, {v(r)}, {v(r+1)}')
            a(f'v_cvt_pk_bf16_f32 {v(d+1)}, {v(r+2)}, {v(r+3)}')
            a(f'buffer_store_dwordx2 {v(d,2)}, {v(T4)}, s[4:7], {base} offen offset:{V_O+tt*640}{SC()}')
    a(f'v_cmp_eq_u32 vcc, 1, {v(T1)}')
    for hb in range(2):
        for tt in range(2):
            r = acc(6, tt) + 2*hb; d = NA + 2*hb + tt
            a(f'v_mul_f32 {v(P)}, {v(r)}, {v(r)}')
            a(f'v_fmac_f32 {v(P)}, {v(r+1)}, {v(r+1)}')
            a(f'v_cndmask_b32 {v(P)}, 0, {v(P)}, vcc')
            a(f'v_add_f32 {v(d)}, {v(d)}, {v(P)}')
    a('s_lshl_b32 s56, s15, 13')
    a('s_lshl_b32 s57, s14, 7')
    a('s_add_u32 s56, s56, s57')
    a(f's_add_u32 s56, s56, {QHI_OFF}')
    a('s_add_u32 s57, s56, 8192')
    a(f'v_lshlrev_b32 {v(T5)}, 2, {v(T0)}')
    HP=52
    a(f'v_cmp_eq_u32 vcc, 0, {v(T1)}')
    a(f'v_mov_b32 {v(P)}, 1.0')
    a(f'v_mov_b32 {v(P+1)}, s58')
    a(f'v_cndmask_b32 {v(P)}, {v(P)}, {v(P+1)}, vcc')
    for tt in range(2):
        r = acc(6,tt)
        for j in range(4): a(f'v_mul_f32 {v(r+j)}, {v(P)}, {v(r+j)}')
        a(f'v_cvt_pk_bf16_f32 {v(HP+2*tt)}, {v(r)}, {v(r+1)}')
        a(f'v_cvt_pk_bf16_f32 {v(HP+2*tt+1)}, {v(r+2)}, {v(r+3)}')
    a('s_and_saveexec_b64 s[40:41], vcc')
    for tt in range(2):
        a(f'buffer_store_dword {v(HP+2*tt)}, {v(T5)}, s[4:7], s56 offen offset:{tt*64}{SC()}')
        a(f'buffer_store_dword {v(HP+2*tt+1)}, {v(T5)}, s[4:7], s57 offen offset:{tt*64}{SC()}')
    a('s_mov_b64 exec, s[40:41]')
    a(f'v_cmp_eq_u32 vcc, 1, {v(T1)}')
    a('s_and_saveexec_b64 s[40:41], vcc')
    for tt in range(2):
        a(f'buffer_store_dword {v(HP+2*tt)}, {v(T5)}, s[4:7], s54 offen offset:{KHI_O+tt*64}{SC()}')
        a(f'buffer_store_dword {v(HP+2*tt+1)}, {v(T5)}, s[4:7], s55 offen offset:{KHI_O+tt*64}{SC()}')
    a('s_mov_b64 exec, s[40:41]')
    NB=56
    for k in range(4): a(f'v_mov_b32_dpp {v(NB+k)}, {v(HP+k)} row_shl:1 row_mask:0xf bank_mask:0xf')
    a(f's_mov_b32 s42, 0x05040100')
    a(f's_mov_b32 s43, 0x07060302')
    for k in range(4):
        a(f'v_perm_b32 {v(60+k)}, {v(NB+k)}, {v(HP+k)}, s42')
        a(f'v_perm_b32 {v(NB+k)}, {v(NB+k)}, {v(HP+k)}, s43')
    a(f'v_lshrrev_b32 {v(T5)}, 3, {v(T0)}')
    a(f'v_mul_u32_u24 {v(T5)}, 320, {v(T5)}')
    a(f'v_and_b32 {v(P)}, 7, {v(T0)}')
    a(f'v_lshl_add_u32 {v(T5)}, {v(P)}, 1, {v(T5)}')
    a(f'v_and_b32 {v(P)}, 0x31, {v(V_LANE)}')
    a(f'v_cmp_eq_u32 vcc, 0x20, {v(P)}')
    a('s_and_saveexec_b64 s[40:41], vcc')
    for tt in range(2):
        o = V_O + tt*640 + 256
        for hb, base in ((0,'s54'),(1,'s55')):
            k = 2*tt + hb
            a(f'buffer_store_dword {v(60+k)}, {v(T5)}, s[4:7], {base} offen offset:{o}{SC()}')
            a(f'buffer_store_dword {v(NB+k)}, {v(T5)}, s[4:7], {base} offen offset:{o+16}{SC()}')
    a('s_mov_b64 exec, s[40:41]')
    a(f'v_and_b32 {v(P)}, 1, {v(V_LANE)}')
    a(f'v_cmp_eq_u32 vcc, 0, {v(P)}')
    a(f'v_lshlrev_b32 {v(T5)}, 4, {v(P)}')
    a(f'v_bfe_u32 {v(P+1)}, {v(V_LANE)}, 1, 1')
    a(f'v_mul_u32_u24 {v(P+1)}, 320, {v(P+1)}')
    a(f'v_add_u32 {v(T5)}, {v(T5)}, {v(P+1)}')
    a(f'v_bfe_u32 {v(P+1)}, {v(V_LANE)}, 2, 1')
    a(f'v_mul_u32_u24 {v(P+1)}, 640, {v(P+1)}')
    a(f'v_add_u32 {v(T5)}, {v(T5)}, {v(P+1)}')
    a(f'v_bfe_u32 {v(P+1)}, {v(V_LANE)}, 3, 1')
    a(f's_mov_b32 s43, {KV_HEAD}')
    a(f'v_mul_lo_u32 {v(P+1)}, {v(P+1)}, s43')
    a(f'v_add_u32 {v(T5)}, {v(T5)}, {v(P+1)}')
    a(f'v_mov_b32 {v(P+2)}, 0x3f803f80')
    a(f'v_cndmask_b32 {v(48)}, 0, {v(P+2)}, vcc')
    for j in range(1,4): a(f'v_mov_b32 {v(48+j)}, {v(48)}')
    a(f'v_cmp_gt_u32 vcc, 16, {v(V_LANE)}')
    a('s_and_saveexec_b64 s[40:41], vcc')
    a(f'buffer_store_dwordx4 {v(48,4)}, {v(T5)}, s[4:7], s54 offen offset:{V_O+288}{SC()}')
    a('s_mov_b64 exec, s[40:41]')
    for d in range(NA, NA+4):
        a(f'v_mov_b32 {v(P)}, {v(d)}')
        a('s_nop 1')
        a(f'v_permlane16_swap_b32 {v(d)}, {v(P)}')
        a('s_nop 1')
        a(f'v_add_f32 {v(d)}, {v(d)}, {v(P)}')
        a(f'v_mov_b32 {v(P)}, {v(d)}')
        a('s_nop 1')
        a(f'v_permlane32_swap_b32 {v(d)}, {v(P)}')
        a('s_nop 1')
        a(f'v_add_f32 {v(d)}, {v(d)}, {v(P)}')
    for hb in range(2):
        d = NA + 2*hb
        a(f'v_max_f32 {v(d)}, {v(d)}, {v(d+1)}')
        for sh in (8,4,2,1):
            a('s_nop 1')
            a(f'v_max_f32_dpp {v(d)}, {v(d)}, {v(d)} row_ror:{sh} row_mask:0xf bank_mask:0xf')
    a(f'v_cmp_eq_u32 vcc, 1, {v(V_LANE)}')
    a(f'v_lshlrev_b32 {v(P+1)}, 8, {v(V_LANE)}')
    a(f's_lshl_b32 s59, s15, 8')
    a(f'v_cndmask_b32 {v(P)}, {v(NA)}, {v(NA+2)}, vcc')
    a(f's_lshl_b32 s42, s14, 2')
    a(f's_add_u32 s59, s59, s42')
    a(f's_add_u32 s59, s59, {NRM_OFF}')
    a(f'v_cmp_gt_u32 vcc, 2, {v(V_LANE)}')
    a('s_and_saveexec_b64 s[40:41], vcc')
    a(f'buffer_store_dword {v(P)}, {v(P+1)}, s[4:7], s59 offen{SC()}')
    a('s_mov_b64 exec, s[40:41]')
    a(f's_branch L_p1done')
    a(f'L_prod:')
    stamp(a, 'p_entry')
    srd(a, 44, P_X, 2048*1152); srd(a, 48, P_WQKV, 576*3456)
    a('s_sub_u32 s12, s10, 4')
    a(f'v_lshrrev_b32 {v(T0)}, 3, {v(V_LANE)}')
    a(f'v_and_b32 {v(T1)}, 7, {v(V_LANE)}')
    a(f'v_xor_b32 {v(T1)}, {v(T1)}, {v(T0)}')
    a(f'v_mul_u32_u24 {v(PX)}, 1152, {v(T0)}')
    a(f'v_lshl_add_u32 {v(PX)}, {v(T1)}, 4, {v(PX)}')
    a(f'v_lshrrev_b32 {v(T0)}, 4, {v(V_LANE)}')
    a(f'v_and_b32 {v(T1)}, 1, {v(T0)}')
    a(f'v_lshlrev_b32 {v(T1)}, 2, {v(T1)}')
    a(f'v_lshrrev_b32 {v(T0)}, 1, {v(T0)}')
    a(f'v_lshl_add_u32 {v(T0)}, {v(T0)}, 4, {v(T1)}')
    a(f'v_mul_u32_u24 {v(PW)}, 3456, {v(T0)}')
    a(f'v_and_b32 {v(T0)}, 15, {v(V_LANE)}')
    if not ctx.oob15: a(f'v_min_u32 {v(T0)}, 14, {v(T0)}')
    a(f'v_mul_u32_u24 {v(T1)}, 52, {v(T0)}')
    a(f'v_lshrrev_b32 {v(T1)}, 8, {v(T1)}')
    a(f'v_mul_u32_u24 {v(T2)}, 5, {v(T1)}')
    a(f'v_sub_u32 {v(T2)}, {v(T0)}, {v(T2)}')
    a(f'v_mul_u32_u24 {v(T1)}, 1152, {v(T1)}')
    a(f'v_lshl_add_u32 {v(T1)}, {v(T2)}, 4, {v(T1)}')
    a(f'v_add_u32 {v(PW)}, {v(PW)}, {v(T1)}')
    if ctx.oob15:
        a(f'v_cmp_eq_u32 vcc, 15, {v(T0)}')
        a(f'v_mov_b32 {v(T1)}, 0x7f000000')
        a(f's_nop 0')
        a(f'v_cndmask_b32 {v(PW)}, {v(PW)}, {v(T1)}, vcc')
    a(f's_mul_i32 s54, s8, {128*1152}')
    a(f's_mul_i32 s14, s12, {4*9216}')
    a('s_add_u32 s54, s54, s14')
    a(f's_mul_i32 s55, s12, 3456')
    a(f's_mul_i32 s14, s9, 72')
    a('s_add_u32 s55, s55, s14')
    a('s_sub_u32 s55, s55, s11')
    a('s_lshl_b32 s56, s12, 12')
    a(f's_mul_i32 s57, s12, {2*2080}')
    a(f's_add_u32 s57, s57, {WOFF}')
    a('s_mov_b32 s53, 0')
    def issue(a):
        for i in range(4):
            a(f's_add_u32 s14, s53, s56')
            a(f's_add_u32 m0, s14, {i*1024}')
            a(f's_add_u32 s15, s54, {i*9216}')
            a(f'buffer_load_dwordx4 {v(PX)}, s[44:47], s15 offen lds')
        for b in range(2):
            for u in range(2):
                a(f's_add_u32 s14, s53, s57')
                a(f's_add_u32 m0, s14, {b*2080+u*1024}')
                a(f's_add_u32 s15, s55, {(8*b+32*u)*3456}')
                a(f'buffer_load_dwordx4 {v(PW)}, s[48:51], s15 offen lds')
        a(f's_add_u32 s54, s54, 128')
        a(f's_add_u32 s55, s55, {64*3456}')
        a(f's_add_u32 s53, s53, {STAGE}')
        a(f's_cmp_eq_u32 s53, {4*STAGE}')
        a(f's_cselect_b32 s53, 0, s53')
    stamp(a, 'p_addr')
    a('s_mov_b32 s52, 0')
    a(f'L_pinit:')
    issue(a)
    a('s_add_u32 s52, s52, 1')
    a('s_cmp_lt_u32 s52, 4')
    a(f's_cbranch_scc1 L_pinit')
    stamp(a, 'prep_iss')
    a('s_waitcnt vmcnt(24)')
    stamp(a, 'p_st0')
    a('s_barrier')
    stamp(a, 'p_B0')
    a('s_waitcnt vmcnt(16)')
    a(f'L_ploop:')
    a('s_barrier')
    issue(a)
    a('s_waitcnt vmcnt(16)')
    a('s_add_u32 s52, s52, 1')
    a('s_cmp_lt_u32 s52, 9')
    a(f's_cbranch_scc1 L_ploop')
    a('s_barrier')
    a('s_waitcnt vmcnt(8)')
    a('s_barrier')
    a('s_waitcnt vmcnt(0)')
    a('s_barrier')
    stamp(a, 'loop')
    a("s_cmp_ge_u32 s12, 3")
    a("s_cbranch_scc1 L_p1done")
    emit_wof(a, 's12')
    a('L_p1done:')
    a('s_waitcnt vmcnt(0)')
    a('s_barrier')
    a('s_lshl_b32 s14, s9, 6')
    a('s_lshl_b32 s15, s8, 2')
    a('s_add_u32 s14, s14, s15')
    a(f's_add_u32 s14, s14, {F1_OFF}')
    emit_flag(a, 's14')
```

```python
from common import *
from syncp import emit_flag, emit_poll
V_LANE=1; V_T0=2; V_T1=3; V_T2=4; V_T3=5
V_QLO=8; V_QHI=12; V_KLO=16; V_KHI=20; V_IDX=22
V_AK=23; V_AH=24; V_AV=25
V_V0=28; V_V1=36; V_S0=48; V_S1=64; V_ACC=80
THRESH=0x42200000
FLAG_LDS=163584
PRIO=6

def emit_tile(a, j, barrier=None, pre=None):
    cur = V_S0 if j % 2 == 0 else V_S1
    oth = V_S1 if j % 2 == 0 else V_S0
    vcur = V_V0 if j % 2 == 0 else V_V1
    voth = V_V1 if j % 2 == 0 else V_V0
    E = lambda lo, hi: [a(f'v_exp_f32 {v(cur+r)}, {v(cur+r)}') for r in range(lo, hi)]
    if pre: pre(a)
    E(0,4)
    a(f'v_smfmac_f32_32x32x32_bf16 {v(V_ACC,16)}, {v(voth+4,4)}, {v(oth+8,8)}, {v(V_IDX)}')
    E(4,8)
    a(f's_waitcnt lgkmcnt(0)')
    a(f'v_mfma_f32_32x32x16_bf16 {v(oth,16)}, {v(V_KLO,4)}, {v(V_QLO,4)}, 0')
    E(8,12)
    a(f'v_mfma_f32_32x32x8bf16_1k {v(oth,16)}, {v(V_KHI,2)}, {v(V_QHI,2)}, {v(oth,16)}')
    if barrier: barrier(a)
    a(f'ds_read_b128 {v(V_KLO,4)}, {v(V_AK)} offset:{(j+2)*TILE_B+KLO_O}')
    a(f'ds_read_b32 {v(V_KHI)}, {v(V_AH)} offset:{(j+2)*TILE_B}')
    a(f'ds_read_b128 {v(voth,4)}, {v(V_AV)} offset:{(j+1)*TILE_B}')
    a(f'ds_read_b128 {v(voth+4,4)}, {v(V_AV)} offset:{(j+1)*TILE_B+640}')
    E(12,16)
    a(f'v_smfmac_f32_32x32x32_bf16 {v(V_ACC,16)}, {v(vcur,4)}, {v(cur,8)}, {v(V_IDX)}')

def emit_phB_ids(a):
    a('s_and_b32 s12, s2, 7')
    a('s_lshr_b32 s13, s2, 3')
    a('s_lshr_b32 s14, s13, 3')
    a('s_lshl_b32 s8, s12, 2')
    a('s_add_u32 s8, s8, s14')
    a('s_and_b32 s9, s13, 7')

def emit_phB(a):
    a(f'v_lshlrev_b32 {v(V_AK)}, 4, {v(V_LANE)}')
    a('s_lshl_b32 s15, s9, 3')
    a('s_add_u32 s15, s15, s10')
    a('s_lshl_b32 s16, s8, 16')
    a('s_lshl_b32 s17, s15, 10')
    a('s_add_u32 s16, s16, s17')
    a(f's_add_u32 s16, s16, {QLO_OFF}')
    a('s_lshl_b32 s17, s8, 13')
    a('s_lshl_b32 s18, s15, 7')
    a('s_add_u32 s17, s17, s18')
    a(f's_add_u32 s17, s17, {QHI_OFF}')
    a(f'v_and_b32 {v(V_T0)}, 31, {v(V_LANE)}')
    a(f'v_lshlrev_b32 {v(V_AH)}, 2, {v(V_T0)}')
    a(f'v_lshlrev_b32 {v(V_T1)}, 2, {v(V_LANE)}')
    a('s_lshl_b32 s18, s8, 8')
    a(f's_add_u32 s18, s18, {NRM_OFF}')
    a(f's_mul_i32 s20, s8, {KV_HEAD}')
    a('s_lshl_b32 s21, s10, 10')
    a('s_add_u32 s20, s20, s21')
    if KV_OFF: a(f's_add_u32 s20, s20, {KV_OFF}')
    a(f'buffer_load_dwordx4 {v(V_QLO,4)}, {v(V_AK)}, s[4:7], s16 offen{SL()}')
    a(f'buffer_load_dword {v(V_QHI)}, {v(V_AH)}, s[4:7], s17 offen{SL()}')
    a(f'buffer_load_dword {v(V_T1)}, {v(V_T1)}, s[4:7], s18 offen{SL()}')
    a('s_mov_b32 s22, 19')
    a(f'L_dma:')
    a('s_mov_b32 m0, s21')
    a('s_add_u32 s21, s21, 8192')
    a(f'buffer_load_dwordx4 {v(V_AK)}, s[4:7], s20 offen{SL()} lds')
    a('s_add_u32 s20, s20, 8192')
    a('s_sub_u32 s22, s22, 1')
    a('s_cmp_lg_u32 s22, 0')
    a(f's_cbranch_scc1 L_dma')
    a(f'v_mov_b32 {v(V_IDX)}, 0xdddddddd')
    a(f'v_mov_b32 {v(V_KHI+1)}, 0x3f803f80')
    a(f'v_add_u32 {v(V_AH)}, {KHI_O}, {v(V_AH)}')
    a(f'v_and_b32 {v(V_T0)}, 31, {v(V_LANE)}')
    a(f'v_subrev_u32 {v(V_T3)}, 16, {v(V_T0)}')
    a(f'v_cmp_gt_u32 vcc, 20, {v(V_T0)}')
    a(f'v_lshrrev_b32 {v(V_AV)}, 5, {v(V_LANE)}')
    a(f'v_mul_u32_u24 {v(V_AV)}, 320, {v(V_AV)}')
    a(f'v_cndmask_b32 {v(V_T0)}, {v(V_T3)}, {v(V_T0)}, vcc')
    a(f'v_lshlrev_b32 {v(V_T0)}, 4, {v(V_T0)}')
    a(f'v_add3_u32 {v(V_AV)}, {v(V_AV)}, {v(V_T0)}, 0')
    a(f'v_add_u32 {v(V_AV)}, {V_O}, {v(V_AV)}')
    for r in range(16): a(f'v_mov_b32 {v(V_ACC+r)}, 0')
    for r in range(8): a(f'v_mov_b32 {v(V_S1+8+r)}, 0')
    for r in range(4): a(f'v_mov_b32 {v(V_V1+4+r)}, 0')
    a('s_waitcnt vmcnt(19)')
    a(f'v_cmp_gt_u32 vcc, 32, {v(V_LANE)}')
    for sh in (8,4,2,1):
        a(f's_nop 1')
        a(f'v_max_f32_dpp {v(V_T1)}, {v(V_T1)}, {v(V_T1)} row_ror:{sh} row_mask:0xf bank_mask:0xf')
    a(f'v_cndmask_b32 {v(V_QHI)}, 0, {v(V_QHI)}, vcc')
    a(f'v_mov_b32 {v(V_T2)}, 0')
    a(f'v_readlane_b32 s26, {v(V_T1)}, 0')
    a(f'v_readlane_b32 s27, {v(V_T1)}, 16')
    a(f'v_readlane_b32 s28, {v(V_T1)}, 32')
    a(f'v_readlane_b32 s29, {v(V_T1)}, 48')
    for r in range(4): a(f'v_dot2_f32_bf16 {v(V_T2)}, {v(V_QLO+r)}, {v(V_QLO+r)}, {v(V_T2)}')
    a(f'v_dot2_f32_bf16 {v(V_T2)}, {v(V_QHI)}, {v(V_QHI)}, {v(V_T2)}')
    a('s_max_u32 s26, s26, s27')
    a('s_max_u32 s28, s28, s29')
    a('s_max_u32 s26, s26, s28')
    a('s_nop 0')
    a(f'v_mov_b32 {v(V_T3)}, {v(V_T2)}')
    a('s_nop 1')
    a(f'v_permlane32_swap_b32 {v(V_T2)}, {v(V_T3)}')
    a('s_nop 1')
    a(f'v_add_f32 {v(V_T2)}, {v(V_T2)}, {v(V_T3)}')
    a(f'v_mul_f32 {v(V_T1)}, s26, {v(V_T2)}')
    a(f'v_sqrt_f32 {v(V_T1)}, {v(V_T1)}')
    a(f'v_mov_b32 {v(V_T3)}, {THRESH}')
    a(f'v_cmp_nle_f32 s[30:31], {v(V_T1)}, {v(V_T3)}')
    a(f'v_add_u32 {v(V_T1)}, 0x1ffff, {v(V_T1)}')
    a(f'v_lshrrev_b32 {v(V_T1)}, 16, {v(V_T1)}')
    a(f'v_or_b32 {v(V_T1)}, 0x8000, {v(V_T1)}')
    a(f'v_cndmask_b32 {v(V_QHI+1)}, 0, {v(V_T1)}, vcc')
    a('s_cmp_lg_u64 s[30:31], 0')
    a('s_cselect_b32 s30, 1, 0')
    a(f'v_mov_b32 {v(V_T1)}, s30')
    a(f's_lshl_b32 s31, s10, 2')
    a(f'v_mov_b32 {v(V_T2)}, s31')
    a(f'v_add_u32 {v(V_T2)}, {FLAG_LDS}, {v(V_T2)}')
    a(f'ds_write_b32 {v(V_T2)}, {v(V_T1)}')
    a('s_waitcnt lgkmcnt(0)')
    a('s_barrier')
    a(f'v_mov_b32 {v(V_T2)}, {FLAG_LDS}')
    a(f'ds_read_b128 {v(V_S0,4)}, {v(V_T2)}')
    a(f'ds_read_b128 {v(V_S0+4,4)}, {v(V_T2)} offset:16')
    a('s_waitcnt lgkmcnt(0)')
    a(f'v_or3_b32 {v(V_S0)}, {v(V_S0)}, {v(V_S0+1)}, {v(V_S0+2)}')
    a(f'v_or3_b32 {v(V_S0+3)}, {v(V_S0+3)}, {v(V_S0+4)}, {v(V_S0+5)}')
    a(f'v_or3_b32 {v(V_S0)}, {v(V_S0)}, {v(V_S0+6)}, {v(V_S0+7)}')
    a(f'v_or_b32 {v(V_S0)}, {v(V_S0)}, {v(V_S0+3)}')
    a('s_nop 0')
    a(f'v_readfirstlane_b32 s30, {v(V_S0)}')
    a('s_cmp_lg_u32 s30, 0')
    a(f's_cbranch_scc1 L_fb')
    a(f'L_fbret:')
    need = [-(-19456*(c+1)//8192) for c in range(8)]
    a(f's_waitcnt vmcnt({19-need[0]})')
    a('s_barrier')
    stamp(a, 'kv0')
    a(f'ds_read_b128 {v(V_KLO,4)}, {v(V_AK)} offset:{KLO_O}')
    a(f'ds_read_b32 {v(V_KHI)}, {v(V_AH)}')
    a(f's_waitcnt lgkmcnt(0)')
    a(f'v_mfma_f32_32x32x16_bf16 {v(V_S0,16)}, {v(V_KLO,4)}, {v(V_QLO,4)}, 0')
    a(f's_nop 9')
    a(f'v_mfma_f32_32x32x8bf16_1k {v(V_S0,16)}, {v(V_KHI,2)}, {v(V_QHI,2)}, {v(V_S0,16)}')
    a(f'ds_read_b128 {v(V_KLO,4)}, {v(V_AK)} offset:{TILE_B+KLO_O}')
    a(f'ds_read_b32 {v(V_KHI)}, {v(V_AH)} offset:{TILE_B}')
    a(f'ds_read_b128 {v(V_V0,4)}, {v(V_AV)}')
    a(f'ds_read_b128 {v(V_V0+4,4)}, {v(V_AV)} offset:640')
    a('s_nop 7')
    a('s_setprio 1')
    a('s_mov_b32 s23, 0')
    a(f'L_loop:')
    def barrier(a):
        lab = f'L_w'
        a('s_cmp_ge_u32 s23, 2')
        a(f's_cbranch_scc1 {lab}_j')
        a('s_cmp_eq_u32 s23, 0')
        a(f's_cbranch_scc0 {lab}_1')
        a(f's_waitcnt vmcnt({19-need[1]})')
        a(f's_branch {lab}_b')
        a(f'{lab}_1:')
        a('s_waitcnt vmcnt(0)')
        a(f'{lab}_b:')
        a('s_barrier')
        a(f'{lab}_j:')
    def mkpre(p):
        def pre(a):
            lab = f'L_p{p}'
            a('s_cmp_ge_u32 s10, 4')
            a(f's_cbranch_scc1 {lab}')
            a(f's_setprio {p}')
            a(f'{lab}:')
        return pre
    for j in range(8):
        pre = None
        if PRIO is not None:
            if j == 0: pre = mkpre(2)
            if j == PRIO: pre = mkpre(0)
        emit_tile(a, j, barrier=barrier if j == 6 else None, pre=pre)
    a(f'v_add_u32 {v(V_AK)}, {8*TILE_B}, {v(V_AK)}')
    a(f'v_add_u32 {v(V_AH)}, {8*TILE_B}, {v(V_AH)}')
    a(f'v_add_u32 {v(V_AV)}, {8*TILE_B}, {v(V_AV)}')
    a('s_add_u32 s23, s23, 1')
    a('s_cmp_lt_u32 s23, 8')
    a(f's_cbranch_scc1 L_loop')
    a('s_setprio 0')
    stamp(a, 'attnloop')
    a('s_nop 1')
    a(f'v_smfmac_f32_32x32x32_bf16 {v(V_ACC,16)}, {v(V_V1+4,4)}, {v(V_S1+8,8)}, {v(V_IDX)}')
    a('s_waitcnt lgkmcnt(0)')
    a('s_nop 15')
    a(f'v_mov_b32 {v(V_T0)}, {v(V_ACC+10)}')
    a(f'v_mov_b32 {v(V_T1)}, {v(V_ACC+10)}')
    a('s_nop 1')
    a(f'v_permlane32_swap_b32 {v(V_T0)}, {v(V_T1)}')
    a('s_nop 1')
    a(f'v_rcp_f32 {v(V_T0)}, {v(V_T0)}')
    a('s_nop 0')
    for r in range(10): a(f'v_mul_f32 {v(V_ACC+r)}, {v(V_ACC+r)}, {v(V_T0)}')
    OP = 8
    for p in range(5): a(f'v_cvt_pk_bf16_f32 {v(OP+p)}, {v(V_ACC+2*p)}, {v(V_ACC+2*p+1)}')
    a('s_nop 1')
    a(f'v_permlane32_swap_b32 {v(OP)}, {v(OP+2)}')
    a(f'v_permlane32_swap_b32 {v(OP+1)}, {v(OP+3)}')
    a(f'v_and_b32 {v(V_T1)}, 31, {v(V_LANE)}')
    a(f'v_lshrrev_b32 {v(V_T2)}, 5, {v(V_LANE)}')
    a(f'v_lshlrev_b32 {v(V_T3)}, 5, {v(V_T1)}')
    a(f'v_lshl_add_u32 {v(V_T3)}, {v(V_T2)}, 4, {v(V_T3)}')
    a('s_lshl_b32 s16, s8, 16')
    a('s_lshl_b32 s17, s15, 10')
    a('s_add_u32 s16, s16, s17')
    a(f's_add_u32 s16, s16, {OLO_OFF}')
    a(f'buffer_store_dwordx4 {v(OP,4)}, {v(V_T3)}, s[4:7], s16 offen{SC()}')
    a(f'v_lshlrev_b32 {v(V_T3)}, 7, {v(V_T1)}')
    a('s_lshl_b32 s16, s15, 12')
    a('s_lshl_b32 s17, s8, 2')
    a('s_add_u32 s16, s16, s17')
    a(f's_add_u32 s16, s16, {OHI_OFF}')
    a(f'v_cmp_gt_u32 vcc, 32, {v(V_LANE)}')
    a('s_and_saveexec_b64 s[24:25], vcc')
    a(f'buffer_store_dword {v(OP+4)}, {v(V_T3)}, s[4:7], s16 offen{SC()}')
    a('s_mov_b64 exec, s[24:25]')

def emit_phB_fallback(a):
    a(f'L_fb:')
    a('s_waitcnt vmcnt(0)')
    a('s_barrier')
    a(f'v_mov_b32 {v(V_QHI+1)}, 0')
    a(f'v_mov_b32 {v(V_T0)}, 0xff800000')
    a(f'v_mov_b32 {v(V_T1)}, {v(V_AK)}')
    a(f'v_mov_b32 {v(V_T2)}, {v(V_AH)}')
    a('s_mov_b32 s23, 64')
    a(f'L_fbl:')
    a(f'ds_read_b128 {v(V_KLO,4)}, {v(V_T1)}')
    a(f'ds_read_b32 {v(V_KHI)}, {v(V_T2)}')
    a('s_waitcnt lgkmcnt(0)')
    a(f'v_mfma_f32_32x32x16_bf16 {v(V_S0,16)}, {v(V_KLO,4)}, {v(V_QLO,4)}, 0')
    a('s_nop 15')
    a(f'v_mfma_f32_32x32x8bf16_1k {v(V_S0,16)}, {v(V_KHI,2)}, {v(V_QHI,2)}, {v(V_S0,16)}')
    a(f'v_add_u32 {v(V_T1)}, {TILE_B}, {v(V_T1)}')
    a(f'v_add_u32 {v(V_T2)}, {TILE_B}, {v(V_T2)}')
    a('s_nop 15')
    for r in range(0,16,2): a(f'v_max3_f32 {v(V_T0)}, {v(V_S0+r)}, {v(V_S0+r+1)}, {v(V_T0)}')
    a('s_sub_u32 s23, s23, 1')
    a('s_cmp_lg_u32 s23, 0')
    a(f's_cbranch_scc1 L_fbl')
    a(f'v_mov_b32 {v(V_T1)}, {v(V_T0)}')
    a('s_nop 1')
    a(f'v_permlane32_swap_b32 {v(V_T0)}, {v(V_T1)}')
    a('s_nop 1')
    a(f'v_max_f32 {v(V_T0)}, {v(V_T0)}, {v(V_T1)}')
    a(f'v_sub_f32 {v(V_T0)}, 0, {v(V_T0)}')
    a(f'v_and_b32 {v(V_T1)}, 0xffff0000, {v(V_T0)}')
    a(f'v_sub_f32 {v(V_T0)}, {v(V_T0)}, {v(V_T1)}')
    a(f'v_and_b32 {v(V_T2)}, 0xffff0000, {v(V_T0)}')
    a(f'v_sub_f32 {v(V_T0)}, {v(V_T0)}, {v(V_T2)}')
    a(f'v_lshrrev_b32 {v(V_T0)}, 16, {v(V_T0)}')
    a(f'v_lshrrev_b32 {v(V_T1)}, 16, {v(V_T1)}')
    a(f'v_or_b32 {v(V_T1)}, {v(V_T1)}, {v(V_T2)}')
    a(f'v_cmp_gt_u32 vcc, 32, {v(V_LANE)}')
    a('s_nop 1')
    a(f'v_cndmask_b32 {v(V_QHI+1)}, {v(V_T0)}, {v(V_T1)}, vcc')
    a(f's_branch L_fbret')
```

```python
from common import *
from syncp import emit_flag, emit_poll
HC_COPY = 4160
UB_O = 4*HC_COPY
CH_STRIDE = 23040
RED_O = 3*CH_STRIDE
V_LANE=1; T0=2; T1=3; T2=4; T3=5; T4=6; T5=7
AA=8; AB=9; DG=10
BF0=16; AF0=32; BF1=48; AF1=64
Y=80; YS=96
def emit_phC(a, lds0=0):
    srd(a, 24, P_SSMK, 576*4096)
    a('s_cmp_lt_u32 s2, 64')
    a('s_cselect_b32 s36, 3, 2')
    a('s_mul_i32 s37, s2, 3')
    a('s_lshl_b32 s38, s2, 1')
    a('s_add_u32 s38, s38, 64')
    a('s_cmp_lt_u32 s2, 64')
    a('s_cselect_b32 s37, s37, s38')
    H = lambda ch: 112 + 6*ch
    U = lambda ch: 132 + 4*ch
    a(f's_lshl_b32 s42, s37, 12')
    a(f's_sub_u32 s42, s42, 64')
    a(f'v_lshlrev_b32 {v(T0)}, 4, v0')
    a(f'v_add_u32 {v(T1)}, s42, {v(T0)}')
    a(f'v_cmp_gt_u32 vcc, 260, v0')
    a(f's_and_saveexec_b64 s[44:45], vcc')
    a(f's_cbranch_execz L_hl_skip')
    for ch in range(3):
        if ch == 2:
            a('s_cmp_eq_u32 s36, 3')
            a('s_cbranch_scc0 L_hl_skip')
        a(f'v_add_u32 {v(T2)}, 16, {v(T1)}')
        a(f'buffer_load_dwordx4 {v(H(ch),4)}, {v(T1)}, s[24:27], 0 offen')
        a(f'buffer_load_dwordx2 {v(H(ch)+4,2)}, {v(T2)}, s[24:27], 0 offen')
        if ch < 2: a(f'v_add_u32 {v(T1)}, 4096, {v(T1)}')
    a('L_hl_skip:')
    a(f's_mov_b64 exec, s[44:45]')
    a(f's_mul_i32 s43, s37, 7282')
    a(f's_lshr_b32 s43, s43, 20')
    a(f's_lshl_b32 s46, s43, 8')
    a(f's_add_u32 s46, s46, {F0_OFF}')
    emit_poll(a, 's46', 64, wave=7)
    a('s_barrier')
    stamp(a, 'f0wait')
    a(f's_mul_i32 s48, s43, 144')
    a(f's_sub_u32 s48, s37, s48')
    a(f's_mul_i32 s43, s43, 9216')
    a(f's_lshl_b32 s48, s48, 6')
    a(f's_add_u32 s43, s43, s48')
    a(f's_add_u32 s43, s43, {UR_OFF + 63*4*9216}')
    a(f'v_lshrrev_b32 {v(T0)}, 2, v0')
    a(f'v_and_b32 {v(T1)}, 3, v0')
    a(f'v_mul_u32_u24 {v(T2)}, {4*9216}, {v(T0)}')
    a(f'v_lshlrev_b32 {v(T3)}, 4, {v(T1)}')
    a(f'v_sub_u32 {v(T2)}, {v(T3)}, {v(T2)}')
    a(f'v_add_u32 {v(T2)}, s43, {v(T2)}')
    a(f'v_mul_u32_u24 {v(T4)}, 80, {v(T0)}')
    a(f'v_add_u32 {v(T4)}, {v(T4)}, {v(T3)}')
    for r in range(12): a(f'v_mov_b32 {v(132+r)}, 0')
    a(f'v_cmp_gt_u32 vcc, 256, v0')
    a(f's_and_saveexec_b64 s[44:45], vcc')
    a(f's_cbranch_execz L_ul_skip')
    for ch in range(3):
        if ch == 2:
            a('s_cmp_eq_u32 s36, 3')
            a('s_cbranch_scc0 L_ul_skip')
        a(f'buffer_load_dwordx4 {v(U(ch),4)}, {v(T2)}, s[4:7], 0 offen offset:{64*ch}{SL()}')
    a('L_ul_skip:')
    a(f's_mov_b64 exec, s[44:45]')
    a(f'v_lshlrev_b32 {v(T0)}, 4, v0')
    if lds0: a(f'v_add_u32 {v(T0)}, {lds0}, {v(T0)}\nv_add_u32 {v(T4)}, {lds0}, {v(T4)}')
    a(f'v_cmp_gt_u32 vcc, 260, v0')
    a(f's_and_saveexec_b64 s[44:45], vcc')
    a(f's_cbranch_execz L_hp_skip')
    a(f'v_cmp_lt_u32 vcc, 3, v0')
    a(f'v_cmp_lt_u32 s[46:47], 2, v0')
    a('s_waitcnt vmcnt(0)')
    for ch in range(3):
        if ch == 2:
            a('s_cmp_eq_u32 s36, 3')
            a('s_cbranch_scc0 L_hp_skip')
        h = H(ch)
        for i in range(4): a(f'v_cndmask_b32 {v(h+i)}, 0, {v(h+i)}, vcc')
        for i in range(4,6): a(f'v_cndmask_b32 {v(h+i)}, 0, {v(h+i)}, s[46:47]')
        for i in range(5): a(f'v_alignbit_b32 {v(24+i)}, {v(h+1+i)}, {v(h+i)}, 16')
        o = ch*CH_STRIDE
        a(f'ds_write_b128 {v(T0)}, {v(24,4)} offset:{o}')
        for i in range(4): a(f'v_mov_b32 {v(32+i)}, {v(h+1+i)}')
        for i in range(4): a(f'v_mov_b32 {v(36+i)}, {v(25+i)}')
        a(f'ds_write_b128 {v(T0)}, {v(32,4)} offset:{o+HC_COPY}')
        a(f'ds_write_b128 {v(T0)}, {v(36,4)} offset:{o+2*HC_COPY}')
        a(f'ds_write_b128 {v(T0)}, {v(h+2,4)} offset:{o+3*HC_COPY}')
    a('L_hp_skip:')
    a(f's_mov_b64 exec, s[44:45]')
    a('s_waitcnt vmcnt(0)')
    a(f'v_cmp_gt_u32 vcc, {79*4}, v0')
    a(f's_and_saveexec_b64 s[44:45], vcc')
    for ch in range(3):
        a(f'ds_write_b128 {v(T4)}, {v(U(ch),4)} offset:{UB_O+ch*CH_STRIDE}')
    a(f's_mov_b64 exec, s[44:45]')
    a('s_waitcnt lgkmcnt(0)')
    a('s_barrier')
    stamp(a, 'staged')
    a('s_mov_b32 s49, s10')
    a('s_lshl_b32 s50, s36, 2')
    a('s_mov_b32 s51, 0')
    a(f'L_unit:')
    a('s_lshr_b32 s39, s49, 2')
    a('s_bfe_u32 s52, s49, 0x10001')
    a('s_and_b32 s53, s49, 1')
    a(f's_mul_i32 s41, s39, {CH_STRIDE}')
    if lds0: a(f's_add_u32 s41, s41, {lds0}')
    a(f'v_and_b32 {v(T0)}, 15, {v(V_LANE)}')
    a(f'v_lshrrev_b32 {v(T1)}, 4, {v(V_LANE)}')
    a(f'v_sub_u32 {v(T2)}, 15, {v(T0)}')
    a(f'v_mul_u32_u24 {v(T2)}, 80, {v(T2)}')
    a(f'v_lshl_add_u32 {v(T2)}, {v(T1)}, 4, {v(T2)}')
    a(f's_mul_i32 s54, s53, 640')
    a(f's_add_u32 s54, s54, s41')
    a(f's_add_u32 s54, s54, {UB_O}')
    a(f'v_add_u32 {v(AB)}, s54, {v(T2)}')
    a(f'v_lshrrev_b32 {v(T2)}, 2, {v(T0)}')
    a(f'v_mul_u32_u24 {v(T2)}, {HC_COPY}, {v(T2)}')
    a(f'v_lshl_add_u32 {v(T2)}, {v(T1)}, 4, {v(T2)}')
    a(f'v_and_b32 {v(T3)}, 3, {v(V_LANE)}')
    a(f'v_lshl_add_u32 {v(T2)}, {v(T3)}, 3, {v(T2)}')
    a(f's_lshl_b32 s54, s52, 5')
    a(f's_lshl_b32 s55, s53, 9')
    a(f's_add_u32 s54, s54, s55')
    a(f's_add_u32 s54, s54, s41')
    a(f'v_add_u32 {v(AA)}, s54, {v(T2)}')
    for r in range(16): a(f'v_mov_b32 {v(Y+r)}, 0')
    def reads(B, A):
        for j in range(4): a(f'ds_read_b128 {v(B+4*j,4)}, {v(AB)} offset:{1280*(3-j)}')
        for q in range(4):
            for e in range(2): a(f'ds_read_b64_tr_b16 {v(A+4*q+2*e,2)}, {v(AA)} offset:{1024*q+8*e}')
        a(f'v_add_u32 {v(AB)}, 80, {v(AB)}')
        a(f'v_add_u32 {v(AA)}, 64, {v(AA)}')
    def mfmas(B, A):
        for q in range(4):
            for jt in range(q,4):
                a(f'v_mfma_f32_16x16x32_bf16 {v(Y+4*jt,4)}, {v(A+4*q,4)}, {v(B+4*(jt-q),4)}, {v(Y+4*jt,4)}')
    reads(BF0, AF0)
    a('s_cmp_eq_u32 s53, 0')
    a(f's_cbranch_scc0 L_nod')
    a('s_add_u32 s40, s37, s39')
    a('s_lshl_b32 s40, s40, 1')
    a('s_and_b32 s55, s40, 0xfffffffc')
    a(f's_load_dword s56, s[{P_D}:{P_D+1}], s55')
    a(f's_lshl_b32 s54, s52, 4')
    a(f's_sub_u32 s54, 31, s54')
    a(f'v_sub_u32 {v(T2)}, s54, {v(T0)}')
    a(f'v_lshlrev_b32 {v(T3)}, 3, {v(T1)}')
    a(f'v_sub_u32 {v(T2)}, {v(T2)}, {v(T3)}')
    a('s_waitcnt lgkmcnt(0)')
    a('s_bitcmp1_b32 s40, 1')
    a('s_cselect_b32 s57, 16, 0')
    a('s_lshr_b32 s56, s56, s57')
    a('s_and_b32 s56, s56, 0xffff')
    a('s_lshl_b32 s57, s56, 16')
    a(f'v_mov_b32 {v(T4)}, s56')
    a(f'v_mov_b32 {v(T5)}, s57')
    for rho in range(4):
        a(f'v_cmp_eq_u32 vcc, {2*rho}, {v(T2)}')
        a(f'v_cmp_eq_u32 s[58:59], {2*rho+1}, {v(T2)}')
        a('s_nop 1')
        a(f'v_cndmask_b32 {v(14)}, 0, {v(T4)}, vcc')
        a(f'v_cndmask_b32 {v(15)}, 0, {v(T5)}, s[58:59]')
        a(f'v_or_b32 {v(DG+rho)}, {v(14)}, {v(15)}')
    a('s_nop 1')
    for jt in range(4):
        a(f'v_mfma_f32_16x16x32_bf16 {v(Y+4*jt,4)}, {v(DG,4)}, {v(BF0+4*jt,4)}, {v(Y+4*jt,4)}')
    a(f'L_nod:')
    a('s_mov_b32 s54, 4')
    a(f'L_r:')
    a('s_waitcnt lgkmcnt(0)')
    reads(BF1, AF1)
    mfmas(BF0, AF0)
    a('s_waitcnt lgkmcnt(0)')
    reads(BF0, AF0)
    mfmas(BF1, AF1)
    a('s_sub_u32 s54, s54, 1')
    a('s_cmp_lg_u32 s54, 0')
    a(f's_cbranch_scc1 L_r')
    a('s_waitcnt lgkmcnt(0)')
    a('s_nop 7')
    a('s_cmp_eq_u32 s53, 0')
    a(f's_cbranch_scc1 L_keep')
    a('s_lshr_b32 s54, s49, 1')
    a('s_lshl_b32 s54, s54, 12')
    a(f's_add_u32 s54, s54, {RED_O+lds0}')
    a(f'v_lshlrev_b32 {v(T2)}, 4, {v(V_LANE)}')
    a(f'v_add_u32 {v(T2)}, s54, {v(T2)}')
    for jt in range(4): a(f'ds_write_b128 {v(T2)}, {v(Y+4*jt,4)} offset:{1024*jt}')
    a(f's_branch L_next')
    a(f'L_keep:')
    a('s_cmp_eq_u32 s51, 0')
    a(f's_cbranch_scc0 L_next')
    for r in range(16): a(f'v_mov_b32 {v(YS+r)}, {v(Y+r)}')
    a(f'L_next:')
    a('s_add_u32 s49, s49, 8')
    a('s_add_u32 s51, s51, 1')
    a('s_cmp_lt_u32 s49, s50')
    a(f's_cbranch_scc1 L_unit')
    a('s_waitcnt lgkmcnt(0)')
    a('s_barrier')
    stamp(a, 'convmm')
    a('s_bitcmp1_b32 s10, 0')
    a(f's_cbranch_scc1 L_cdone')
    a('s_mov_b32 s49, s10')
    a(f'L_fin:')
    a('s_lshr_b32 s54, s49, 1')
    a('s_lshl_b32 s54, s54, 12')
    a(f's_add_u32 s54, s54, {RED_O+lds0}')
    a(f'v_lshlrev_b32 {v(T2)}, 4, {v(V_LANE)}')
    a(f'v_add_u32 {v(T2)}, s54, {v(T2)}')
    for jt in range(4): a(f'ds_read_b128 {v(BF0+4*jt,4)}, {v(T2)} offset:{1024*jt}')
    a('s_lshr_b32 s39, s49, 2')
    a('s_add_u32 s40, s37, s39')
    a('s_lshl_b32 s40, s40, 12')
    a('s_bfe_u32 s52, s49, 0x10001')
    a('s_lshl_b32 s52, s52, 5')
    a('s_add_u32 s40, s40, s52')
    a(f's_add_u32 s40, s40, {Y_OFF}')
    a(f'v_and_b32 {v(T0)}, 15, {v(V_LANE)}')
    a(f'v_lshrrev_b32 {v(T1)}, 4, {v(V_LANE)}')
    a(f'v_lshlrev_b32 {v(T0)}, 6, {v(T0)}')
    a(f'v_lshl_add_u32 {v(T0)}, {v(T1)}, 3, {v(T0)}')
    a('s_waitcnt lgkmcnt(0)')
    for jt in range(4):
        for r in range(4): a(f'v_add_f32 {v(BF0+4*jt+r)}, {v(BF0+4*jt+r)}, {v(YS+4*jt+r)}')
        a(f'v_cvt_pk_bf16_f32 {v(AF0+2*jt)}, {v(BF0+4*jt)}, {v(BF0+4*jt+1)}')
        a(f'v_cvt_pk_bf16_f32 {v(AF0+2*jt+1)}, {v(BF0+4*jt+2)}, {v(BF0+4*jt+3)}')
        a(f'buffer_store_dwordx2 {v(AF0+2*jt,2)}, {v(T0)}, s[4:7], s40 offen offset:{1024*jt}{SC()}')
    a('s_add_u32 s49, s49, 8')
    a('s_cmp_lt_u32 s49, s50')
    a(f's_cbranch_scc0 L_cdone')
    for r in range(16): a(f'v_mov_b32 {v(YS+r)}, {v(Y+r)}')
    a(f's_branch L_fin')
    a(f'L_cdone:')
```

```python
from common import *
from syncp import emit_flag, emit_poll
V_LANE=1; T0=2; T1=3; T2=4; T3=5; T4=6; T5=7
AF=16; AF8=88; BFR=160; ACC=176; XR=188; YR=194; GX=208
NPRE = None
def emit_phD_pre(a):
    srd(a, 16, P_X, 2048*1152); srd(a, 20, P_OUT, 2048*1152); srd(a, 24, P_GATE, 1152)
    a('s_and_b32 s12, s2, 7')
    a('s_lshr_b32 s13, s2, 3')
    a('s_lshr_b32 s14, s13, 2')
    a('s_lshl_b32 s44, s12, 8')
    a('s_lshl_b32 s14, s14, 5')
    a('s_add_u32 s44, s44, s14')
    a('s_and_b32 s45, s13, 3')
    a(f'v_lshlrev_b32 {v(T5)}, 4, {v(V_LANE)}')
    a('s_mul_i32 s14, s45, 9')
    a('s_add_u32 s46, s14, s10')
    a('s_lshl_b32 s46, s46, 10')
    a(f's_add_u32 s46, s46, {WOF_OFF}')
    for k in range(18):
        a(f'buffer_load_dwordx4 {v(AF+4*k,4)}, {v(T5)}, s[4:7], s46 offen{SL()}')
        if k < 17: a(f's_add_u32 s46, s46, {36*1024}')
    a(f'v_and_b32 {v(T0)}, 15, {v(V_LANE)}')
    a(f'v_lshrrev_b32 {v(T1)}, 4, {v(V_LANE)}')
    a(f'v_mul_u32_u24 {v(T2)}, 1152, {v(T0)}')
    a(f'v_lshl_add_u32 {v(T2)}, {v(T1)}, 3, {v(T2)}')
    a('s_mul_i32 s28, s44, 1152')
    a('s_mul_i32 s29, s45, 288')
    a('s_add_u32 s28, s28, s29')
    a('s_lshl_b32 s29, s10, 5')
    a('s_add_u32 s30, s28, s29')
    a(f's_add_u32 s31, s30, {16*1152}')
    a(f's_mul_i32 s32, s10, {16*1152}')
    a('s_add_u32 s32, s32, s28')
    a('s_add_u32 s32, s32, 256')
    a(f'buffer_load_dwordx2 {v(XR,2)}, {v(T2)}, s[16:19], s30 offen')
    a(f'buffer_load_dwordx2 {v(XR+2,2)}, {v(T2)}, s[16:19], s31 offen')
    a(f'buffer_load_dwordx2 {v(XR+4,2)}, {v(T2)}, s[16:19], s32 offen')
    a(f'v_add_u32 {v(T4)}, s44, {v(T1)}')
    a('s_lshl_b32 s36, s10, 2')
    a(f'v_add_u32 {v(T4)}, s36, {v(T4)}')
    a('s_mov_b32 s36, 1152')
    a(f'v_mul_lo_u32 {v(T4)}, {v(T4)}, s36')
    a(f'v_lshl_add_u32 {v(T4)}, {v(T0)}, 4, {v(T4)}')
    a(f'v_lshlrev_b32 {v(14)}, 4, {v(T0)}')
    GW = GX+20
    for m in range(5):
        if m == 4:
            a(f'v_cmp_gt_u32 vcc, 8, {v(T0)}')
            for i in range(4): a(f'v_mov_b32 {v(GX+16+i)}, 0\nv_mov_b32 {v(GW+16+i)}, 0')
            a('s_and_saveexec_b64 s[38:39], vcc')
        a(f'buffer_load_dwordx4 {v(GX+4*m,4)}, {v(T4)}, s[16:19], 0 offen offset:{256*m}')
        a(f'buffer_load_dwordx4 {v(GW+4*m,4)}, {v(14)}, s[24:27], 0 offen offset:{256*m}')
        if m == 4: a('s_mov_b64 exec, s[38:39]')
    n = 18 + 3 + 10
    a('s_cmp_lt_u32 s10, 2')
    a(f's_cbranch_scc0 L_no8')
    a('s_mul_i32 s14, s45, 9')
    a('s_add_u32 s46, s14, 8')
    a('s_lshl_b32 s46, s46, 10')
    a(f's_add_u32 s46, s46, {WOF_OFF}')
    for k in range(18):
        a(f'buffer_load_dwordx4 {v(AF8+4*k,4)}, {v(T5)}, s[4:7], s46 offen{SL()}')
        if k < 17: a(f's_add_u32 s46, s46, {36*1024}')
    a(f'L_no8:')
    return n

def emit_phD_main(a):
    GW = GX+20
    a(f'v_and_b32 {v(T0)}, 15, {v(V_LANE)}')
    a(f'v_lshrrev_b32 {v(T1)}, 4, {v(V_LANE)}')
    a(f'v_lshrrev_b32 {v(8)}, 1, {v(T1)}')
    a(f'v_lshlrev_b32 {v(8)}, 16, {v(8)}')
    a(f'v_lshl_add_u32 {v(8)}, {v(T0)}, 5, {v(8)}')
    a(f'v_and_b32 {v(9)}, 1, {v(T1)}')
    a(f'v_lshl_add_u32 {v(8)}, {v(9)}, 4, {v(8)}')
    a(f'v_lshlrev_b32 {v(9)}, 7, {v(T0)}')
    a(f'v_lshl_add_u32 {v(9)}, {v(T1)}, 4, {v(9)}')
    a('s_mov_b32 s36, s10')
    a(f'L_odma:')
    a('s_lshr_b32 s37, s36, 1')
    a('s_and_b32 s38, s36, 1')
    a('s_lshl_b32 m0, s36, 10')
    a('s_lshl_b32 s39, s38, 4')
    a('s_add_u32 s39, s39, s44')
    a('s_cmp_lt_u32 s37, 16')
    a(f's_cbranch_scc0 L_ohi')
    a('s_lshl_b32 s40, s37, 17')
    a('s_lshl_b32 s39, s39, 5')
    a('s_add_u32 s40, s40, s39')
    a(f's_add_u32 s40, s40, {OLO_OFF}')
    a(f'buffer_load_dwordx4 {v(8)}, s[4:7], s40 offen{SL()} lds')
    a(f's_branch L_onext')
    a(f'L_ohi:')
    a('s_sub_u32 s37, s37, 16')
    a('s_lshl_b32 s40, s37, 6')
    a('s_lshl_b32 s39, s39, 7')
    a('s_add_u32 s40, s40, s39')
    a(f's_add_u32 s40, s40, {OHI_OFF}')
    a(f'buffer_load_dwordx4 {v(9)}, s[4:7], s40 offen{SL()} lds')
    a(f'L_onext:')
    a('s_add_u32 s36, s36, 8')
    a('s_cmp_lt_u32 s36, 36')
    a(f's_cbranch_scc1 L_odma')
    a(f'v_lshlrev_b32 {v(T3)}, 14, {v(T1)}')
    a(f'v_and_b32 {v(T4)}, 14, {v(T0)}')
    a(f'v_lshl_add_u32 {v(T3)}, {v(T4)}, 1, {v(T3)}')
    a(f's_mul_i32 s33, s45, {144*4096}')
    a('s_lshl_b32 s34, s44, 1')
    a('s_add_u32 s33, s33, s34')
    a(f's_add_u32 s33, s33, {Y_OFF}')
    a('s_lshl_b32 s34, s10, 16')
    a('s_add_u32 s34, s34, s33')
    a('s_lshl_b32 s35, s10, 5')
    a('s_add_u32 s35, s35, s33')
    a(f's_add_u32 s35, s35, {8*16*4096}')
    for r in range(4):
        a(f's_add_u32 s36, s34, {r*4096}')
        a(f'buffer_load_dword {v(YR+r)}, {v(T3)}, s[4:7], s36 offen{SL()}')
        a(f'buffer_load_dword {v(YR+4+r)}, {v(T3)}, s[4:7], s36 offen offset:32{SL()}')
        a(f's_add_u32 s36, s35, {r*4096}')
        a(f'buffer_load_dword {v(YR+8+r)}, {v(T3)}, s[4:7], s36 offen{SL()}')
    a('s_waitcnt vmcnt(16)')
    G = 10
    a(f'v_mov_b32 {v(G)}, 0')
    for i in range(20): a(f'v_dot2_f32_bf16 {v(G)}, {v(GX+i)}, {v(GW+i)}, {v(G)}')
    a('s_nop 3')
    for sh in (8,4,2,1):
        a('s_nop 1')
        a(f'v_add_f32_dpp {v(G)}, {v(G)}, {v(G)} row_ror:{sh} row_mask:0xf bank_mask:0xf')
    a(f'v_mul_f32 {v(G)}, 0xbfb8aa3b, {v(G)}')
    a(f'v_exp_f32 {v(G)}, {v(G)}')
    a('s_nop 0')
    a(f'v_add_f32 {v(G)}, 1.0, {v(G)}')
    a(f'v_rcp_f32 {v(G)}, {v(G)}')
    a(f's_lshl_b32 s36, s10, 4')
    a(f'v_lshl_add_u32 {v(11)}, {v(T1)}, 2, s36')
    a(f'ds_write_b32 {v(11)}, {v(G)} offset:40960')
    for r in range(12): a(f'v_mov_b32 {v(ACC+r)}, 0')
    a('s_waitcnt vmcnt(0) lgkmcnt(0)')
    a('s_barrier')
    stamp(a, 'oarr')
    a(f'v_lshlrev_b32 {v(11)}, 2, {v(T0)}')
    a(f'ds_read_b32 {v(12)}, {v(11)} offset:40960')
    a(f'ds_read_b32 {v(13)}, {v(11)} offset:{40960+64}')
    a(f'v_lshlrev_b32 {v(T5)}, 4, {v(V_LANE)}')
    BX = 248
    BX = GX
    a('s_lshl_b32 s36, s10, 10')
    a(f'v_add_u32 {v(11)}, s36, {v(T5)}')
    for ver in range(2):
        three = (ver == 1)
        if ver == 0:
            a('s_cmp_lt_u32 s10, 2')
            a('s_cbranch_scc1 L_o3')
        else:
            a('L_o3:')
        def rd(k):
            s = BFR + 8*(k % 2)
            a(f'ds_read_b128 {v(s,4)}, {v(T5)} offset:{(2*k)*1024}')
            a(f'ds_read_b128 {v(s+4,4)}, {v(T5)} offset:{(2*k+1)*1024}')
            if three: a(f'ds_read_b128 {v(BX+4*(k%2),4)}, {v(11)} offset:{(2*k)*1024}')
        per = 3 if three else 2
        rd(0)
        for k in range(18):
            if k+1 < 18: rd(k+1)
            a(f's_waitcnt lgkmcnt({per if k+1 < 18 else 0})')
            s = BFR + 8*(k % 2)
            a(f'v_mfma_f32_16x16x32_bf16 {v(ACC,4)}, {v(AF+4*k,4)}, {v(s,4)}, {v(ACC,4)}')
            a(f'v_mfma_f32_16x16x32_bf16 {v(ACC+4,4)}, {v(AF+4*k,4)}, {v(s+4,4)}, {v(ACC+4,4)}')
            if three: a(f'v_mfma_f32_16x16x32_bf16 {v(ACC+8,4)}, {v(AF8+4*k,4)}, {v(BX+4*(k%2),4)}, {v(ACC+8,4)}')
        if ver == 0: a('s_branch L_odonemm')
    a('L_odonemm:')
    a('s_nop 7')
    a(f'v_mul_u32_u24 {v(T2)}, 1152, {v(T0)}')
    a(f'v_lshl_add_u32 {v(T2)}, {v(T1)}, 3, {v(T2)}')
    a('s_cmp_eq_u32 s10, 1')
    a('s_cselect_b64 vcc, -1, 0')
    a(f'v_cndmask_b32 {v(14)}, {v(12)}, {v(13)}, vcc')
    a(f'v_and_b32 {v(9)}, 1, {v(T0)}')
    a(f'v_lshlrev_b32 {v(9)}, 4, {v(9)}')
    for ti, (greg, soff) in enumerate(((12,'s30'),(13,'s31'),(14,'s32'))):
        if ti == 2:
            a('s_cmp_lt_u32 s10, 2')
            a(f's_cbranch_scc0 L_odone')
        a(f'v_sub_f32 {v(15)}, 1.0, {v(greg)}')
        for r in range(4):
            xs = XR + 2*ti + (r >> 1)
            if r & 1: a(f'v_and_b32 {v(T3)}, 0xffff0000, {v(xs)}')
            else: a(f'v_lshlrev_b32 {v(T3)}, 16, {v(xs)}')
            a(f'v_lshrrev_b32 {v(T4)}, {v(9)}, {v(YR+4*ti+r)}')
            a(f'v_lshlrev_b32 {v(T4)}, 16, {v(T4)}')
            a(f'v_mul_f32 {v(T3)}, {v(T3)}, {v(T4)}')
            a(f'v_mul_f32 {v(T3)}, {v(T3)}, {v(15)}')
            a(f'v_fma_f32 {v(ACC+4*ti+r)}, {v(ACC+4*ti+r)}, {v(greg)}, {v(T3)}')
        d = 160 + 2*ti
        a(f'v_cvt_pk_bf16_f32 {v(d)}, {v(ACC+4*ti)}, {v(ACC+4*ti+1)}')
        a(f'v_cvt_pk_bf16_f32 {v(d+1)}, {v(ACC+4*ti+2)}, {v(ACC+4*ti+3)}')
        a(f'buffer_store_dwordx2 {v(d,2)}, {v(T2)}, s[20:23], {soff} offen')
    a(f'L_odone:')
```

```python
import sys
from common import *
import common
from syncp import emit_flag, emit_poll
import phA, phB, phC, phD
NAME = 'gated_mix__mha_block__ssm_conv_h3__prompt_kernel'
def build(stamp_on=False):
    ctx.stamp = stamp_on
    a = Asm()
    a(f'.globl {NAME}\n.p2align 8\n.type {NAME},@function\n{NAME}:')
    a('s_cmp_ge_u32 s2, 256')
    a('s_cbranch_scc1 L_end')
    a('s_load_dwordx16 s[64:79], s[0:1], 0')
    a('s_load_dwordx8 s[80:87], s[0:1], 64')
    a('s_load_dwordx2 s[88:89], s[0:1], 96')
    a('v_lshrrev_b32 v2, 6, v0')
    a('v_and_b32 v1, 63, v0')
    a('v_readfirstlane_b32 s10, v2')
    if stamp_on:
        a('v_mov_b32 v255, 0')
        stamp_rt(a, 62)
        stamp(a, 'start')
    a('s_waitcnt lgkmcnt(0)')
    srd(a, 4, P_WS, WS_END)
    a('v_mov_b32 v2, 0')
    a(f's_mov_b32 s12, {EPOCH_OFF}')
    a('buffer_load_dword v254, v2, s[4:7], s12 offen sc1')
    a('s_cmp_ge_u32 s10, 4')
    a('s_cbranch_scc1 L_nonce_later')
    a('L_nonce_later:')
    a('s_waitcnt vmcnt(0)')
    a('v_readfirstlane_b32 s3, v254')
    a('s_mul_i32 s3, s3, 0x0019660d')
    a('s_add_u32 s3, s3, 0x3c6ef35f')
    phA.emit_phA(a)
    stamp(a, 'p1done')
    phC.emit_phC(a)
    stamp(a, 'convend')
    phB.emit_phB_ids(a)
    a('s_lshr_b32 s14, s8, 1')
    a('s_lshl_b32 s14, s14, 6')
    a(f's_add_u32 s14, s14, {F1_OFF}')
    emit_poll(a, 's14', 16, wave=7)
    a('s_waitcnt vmcnt(0)')
    a('s_barrier')
    a('s_lshl_b32 s14, s2, 2')
    a(f's_add_u32 s14, s14, {F2_OFF}')
    emit_flag(a, 's14')
    phB.emit_phB(a)
    stamp(a, 'attnend')
    n = phD.emit_phD_pre(a)
    a(f's_waitcnt vmcnt({n})')
    a('s_barrier')
    a('s_lshl_b32 s14, s9, 7')
    a('s_lshl_b32 s15, s8, 2')
    a('s_add_u32 s14, s14, s15')
    a(f's_add_u32 s14, s14, {F3_OFF}')
    emit_flag(a, 's14')
    a('s_and_b32 s14, s2, 7')
    a('s_lshl_b32 s14, s14, 7')
    a(f's_add_u32 s14, s14, {F3_OFF}')
    emit_poll(a, 's14', 32, wave=7)
    a(f's_mov_b32 s14, {F2_OFF}')
    emit_poll(a, 's14', 64, wide=4, wave=6)
    a('s_barrier')
    stamp(a, 'f3wait')
    phD.emit_phD_main(a)
    a('s_cmp_eq_u32 s2, 0')
    a('s_cbranch_scc0 L_noep')
    a(f's_mov_b32 s14, {EPOCH_OFF}')
    emit_flag(a, 's14')
    a('L_noep:')
    if stamp_on:
        a('s_waitcnt vmcnt(0)')
        stamp(a, 'end')
        stamp_rt(a, 63)
        stamp_dump(a)
    a('s_branch L_end')
    phB.emit_phB_fallback(a)
    a('L_end:')
    a('s_endpgm')
    txt = HEADER + f'; @launch grid=(256,1,1) block=(512,1,1) lds=163840\n'
    txt += '.amdgcn_target "amdgcn-amd-amdhsa--gfx950"\n.text\n' + a.text()
    txt += '.section .rodata,"a"\n' + kd(NAME, 256, sgpr=102)
    return txt
if __name__ == '__main__':
    ctx.oob15 = 'oob15' in sys.argv
    ctx.sl = 'sl' in sys.argv
    ctx.noprep = 'noprep' in sys.argv
    for o in sys.argv[2:]:
        if o.startswith('thr='): phB.THRESH = int(o[4:], 16)
    txt = build(stamp_on=('stamp' in sys.argv[2:]))
    import json
    txt = txt.replace('; @launch', '; STAMPS ' + json.dumps(STAMPS) + '\n; @launch', 1)
    open(sys.argv[1], 'w').write(txt)
```

```python
S=2048; D=576; H=32; DH=18
TILE_B = 2432
KLO_O, KHI_O, V_O = 0, 1024, 1152
KV_HEAD = 64*TILE_B
KV_OFF  = 0
QLO_OFF = 0x500000
QHI_OFF = QLO_OFF + 32*65536
NRM_OFF = QHI_OFF + 32*8192
G_OFF   = NRM_OFF + 8192
UR_OFF  = G_OFF + 8192
Y_OFF   = UR_OFF + 576*4096
OLO_OFF = Y_OFF + 576*4096
OHI_OFF = OLO_OFF + 32*65536
WOF_OFF = OHI_OFF + 2048*128
FLAG_OFF = WOF_OFF + 576*576*2
F0_OFF = FLAG_OFF
F1_OFF = F0_OFF + 8192
F2_OFF = F1_OFF + 4096
F3_OFF = F2_OFF + 8192
EPOCH_OFF = F3_OFF + 4096
DBG_OFF = FLAG_OFF + 32768
WS_END  = FLAG_OFF + 262144
CSCALE = 1.4426950408889634 / (18 ** 0.5)
def lo_dims(h):
    return (list(range(16)), [16,17]) if h % 2 == 0 else (list(range(2,18)), [0,1])
```

```python
from common import *
from syncp import emit_flag, emit_poll
import struct
XS = 16384; WS_ = 18432; STAGE = XS + WS_; DUMMY = 4*STAGE
V_LANE=1; T0=2; T1=3; T2=4; T3=5; T4=6; T5=7
AX0=8; AX1=9; AW=10; AWH=11; CX0=12; CX1=13; CW=14; CWH=15
PX=16; PW=17
XF=32; WF=48; ACC=64
CS_BITS = struct.unpack('<I', struct.pack('<f', CSCALE))[0]

def emit_roles(a):
    a('s_and_b32 s12, s2, 7')
    a('s_lshr_b32 s13, s2, 3')
    a('s_lshr_b32 s14, s12, 1')
    a('s_lshl_b32 s14, s14, 2')
    a('s_and_b32 s15, s13, 3')
    a('s_add_u32 s8, s14, s15')
    a('s_and_b32 s14, s12, 1')
    a('s_mul_i32 s14, s14, 6')
    a('s_lshr_b32 s15, s13, 2')
    a('s_add_u32 s14, s14, s15')
    a('s_lshr_b32 s11, s14, 2')
    a('s_and_b32 s9, s14, 3')
    a('s_lshl_b32 s14, s13, 3')
    a('s_add_u32 s14, s14, s12')
    a('s_sub_u32 s33, s14, 192')
    a('s_cmp_ge_u32 s13, 24')
    a('s_cselect_b32 s32, 1, 0')
    a('s_cselect_b32 s35, 3, 2')
    a('s_mul_i32 s15, s33, 3')
    a('s_lshl_b32 s34, s14, 1')
    a('s_add_u32 s34, s34, 192')
    a('s_cmp_ge_u32 s13, 24')
    a('s_cselect_b32 s34, s15, s34')

def emit_l2_prefetch(a):
    lab = 'L_pf'
    srd(a, 44, P_X, 2048*1152); srd(a, 48, P_WQKV, 576*3456)
    a('s_lshr_b32 s14, s12, 1')
    a('s_lshl_b32 s14, s14, 9')
    a('s_lshl_b32 s15, s13, 4')
    a('s_add_u32 s14, s14, s15')
    a('s_mul_i32 s14, s14, 1152')
    a(f'v_lshlrev_b32 {v(T0)}, 7, {v(V_LANE)}')
    a('s_mul_i32 s15, s10, 6144')
    a('s_add_u32 s14, s14, s15')
    a(f'v_cmp_gt_u32 vcc, 48, {v(V_LANE)}')
    a('s_cmp_lt_u32 s10, 3')
    a('s_cselect_b64 s[40:41], vcc, 0')
    a('s_mov_b64 s[42:43], exec')
    a('s_mov_b64 exec, s[40:41]')
    a(f's_cbranch_execz {lab}_x')
    a(f'buffer_load_dword {v(20)}, {v(T0)}, s[44:47], s14 offen')
    a(f'{lab}_x:')
    a('s_mov_b64 exec, s[42:43]')
    a('s_lshl_b32 s15, s10, 6')
    a(f'v_add_u32 {v(T0)}, s15, {v(V_LANE)}')
    a(f'v_mul_u32_u24 {v(T1)}, 4682, {v(T0)}')
    a(f'v_lshrrev_b32 {v(T1)}, 16, {v(T1)}')
    a(f'v_mul_u32_u24 {v(T2)}, 14, {v(T1)}')
    a(f'v_sub_u32 {v(T2)}, {v(T0)}, {v(T2)}')
    a(f'v_mul_u32_u24 {v(T1)}, 3456, {v(T1)}')
    a(f'v_lshl_add_u32 {v(T1)}, {v(T2)}, 7, {v(T1)}')
    a('s_mul_i32 s14, s13, %d' % (18*3456))
    a('s_and_b32 s15, s12, 1')
    a('s_mul_i32 s15, s15, 1664')
    a('s_add_u32 s14, s14, s15')
    a(f'buffer_load_dword {v(21)}, {v(T1)}, s[48:51], s14 offen')

def gemm_loop(a, vkind, tag):
    a(f'L_cloop{tag}:')
    a('s_barrier')
    a(f'v_add_u32 {v(CX0)}, s53, {v(AX0)}')
    a(f'v_add_u32 {v(CX1)}, s53, {v(AX1)}')
    a(f'v_add_u32 {v(CW)}, s53, {v(AW)}')
    a(f'v_add_u32 {v(CWH)}, s53, {v(AWH)}')
    def xf(tt, ks): return XF + 4*(2*ks+tt)
    def wread(step):
        ks, f = divmod(step, 9)
        slot = WF + 4*(step % 4)
        for e in range(2):
            if f < 8: a(f'ds_read_b64_tr_b16 {v(slot+2*e,2)}, {v(CW)} offset:{e*2304+ks*9216+8*(9*(f>>1)+5*(f&1))}')
            else:     a(f'ds_read_b64_tr_b16 {v(slot+2*e,2)}, {v(CWH)} offset:{e*2304+ks*9216}')
    a(f'ds_read_b128 {v(xf(0,0),4)}, {v(CX0)}')
    a(f'ds_read_b128 {v(xf(1,0),4)}, {v(CX0)} offset:2048')
    wread(0); wread(1)
    a(f'ds_read_b128 {v(xf(0,1),4)}, {v(CX1)}')
    a(f'ds_read_b128 {v(xf(1,1),4)}, {v(CX1)} offset:2048')
    wread(2)
    waits = [8,8]+[6]*13+[4,2,0]
    for step in range(18):
        ks, f = divmod(step, 9)
        if step+3 < 18: wread(step+3)
        a(f's_waitcnt lgkmcnt({waits[step]})')
        slot = WF + 4*(step % 4)
        for tt in range(2):
            acc = ACC + 4*(2*f+tt)
            if vkind: a(f'v_mfma_f32_16x16x32_bf16 {v(acc,4)}, {v(xf(tt,ks),4)}, {v(slot,4)}, {v(acc,4)}')
            else:     a(f'v_mfma_f32_16x16x32_bf16 {v(acc,4)}, {v(slot,4)}, {v(xf(tt,ks),4)}, {v(acc,4)}')
    a(f's_add_u32 s53, s53, {STAGE}')
    a(f's_cmp_eq_u32 s53, {4*STAGE}')
    a(f's_cselect_b32 s53, 0, s53')
    a('s_add_u32 s52, s52, 1')
    a('s_cmp_lt_u32 s52, 9')
    a(f's_cbranch_scc1 L_cloop{tag}')

def emit_gemm_consumer(a, pre_loop):
    emit_l2_prefetch(a)
    a(f'v_and_b32 {v(T0)}, 15, {v(V_LANE)}')
    a(f'v_lshrrev_b32 {v(T1)}, 4, {v(V_LANE)}')
    a(f'v_and_b32 {v(T2)}, 7, {v(V_LANE)}')
    a(f'v_xor_b32 {v(T2)}, {v(T2)}, {v(T1)}')
    a(f's_lshl_b32 s14, s10, 12')
    a(f'v_lshl_add_u32 {v(AX0)}, {v(T0)}, 7, s14')
    a(f'v_lshl_add_u32 {v(AX0)}, {v(T2)}, 4, {v(AX0)}')
    a(f'v_xor_b32 {v(AX1)}, 64, {v(AX0)}')
    a(f'v_lshrrev_b32 {v(T2)}, 2, {v(T0)}')
    a(f'v_and_b32 {v(T3)}, 1, {v(T1)}')
    a(f'v_lshl_add_u32 {v(T2)}, {v(T3)}, 2, {v(T2)}')
    a(f'v_lshrrev_b32 {v(T3)}, 1, {v(T1)}')
    a(f'v_lshl_add_u32 {v(T2)}, {v(T3)}, 4, {v(T2)}')
    a(f'v_mul_u32_u24 {v(T2)}, 288, {v(T2)}')
    a(f'v_add_u32 {v(T2)}, {XS}, {v(T2)}')
    a(f'v_and_b32 {v(T3)}, 3, {v(V_LANE)}')
    a(f'v_lshl_add_u32 {v(AW)}, {v(T3)}, 3, {v(T2)}')
    a(f'v_mul_u32_u24 {v(T4)}, 72, {v(T3)}')
    a(f'v_add3_u32 {v(AWH)}, {v(T2)}, {v(T4)}, 32')
    for r in range(72): a(f'v_mov_b32 {v(ACC+r)}, 0')
    pre_loop(a)
    a('s_mov_b32 s52, 0')
    a('s_mov_b32 s53, 0')
    stamp(a, 'c_ready')
    a('s_cmp_eq_u32 s11, 2')
    a('s_cbranch_scc1 L_cloopV')
    gemm_loop(a, False, 'Q')
    a('s_branch L_cdone_loop')
    gemm_loop(a, True, 'V')
    a('L_cdone_loop:')
    a('s_barrier')
    stamp(a, 'loop')
    acc = lambda f, tt: ACC + 4*(2*f+tt)
    a(f'v_and_b32 {v(T0)}, 15, {v(V_LANE)}')
    a(f'v_lshrrev_b32 {v(T1)}, 4, {v(V_LANE)}')
    a('s_lshl_b32 s14, s8, 2')
    a('s_add_u32 s14, s14, s10')
    a('s_lshl_b32 s15, s9, 3')
    a(f'v_and_b32 {v(T3)}, 1, {v(T1)}')
    a('s_cmp_eq_u32 s11, 2')
    a('s_cbranch_scc1 L_epV')
    a(f'v_lshrrev_b32 {v(T2)}, 1, {v(T1)}')
    a(f'v_lshlrev_b32 {v(T2)}, 9, {v(T2)}')
    a(f'v_lshl_add_u32 {v(T2)}, {v(T0)}, 4, {v(T2)}')
    a(f'v_lshl_add_u32 {v(T2)}, {v(T3)}, 3, {v(T2)}')
    a(f's_mul_i32 s54, s15, {KV_HEAD}')
    a(f's_mul_i32 s56, s14, {TILE_B}')
    a('s_add_u32 s54, s54, s56')
    a('s_lshl_b32 s56, s15, 16')
    a('s_lshl_b32 s57, s14, 10')
    a('s_add_u32 s56, s56, s57')
    a(f's_add_u32 s56, s56, {QLO_OFF}')
    a(f's_mov_b32 s57, {KV_HEAD}')
    a('s_cmp_eq_u32 s11, 0')
    a('s_cselect_b32 s54, s56, s54')
    a('s_cselect_b32 s55, 65536, s57')
    a(f's_mov_b32 s58, {CS_BITS}')
    a('s_cselect_b32 s58, s58, 1.0')
    PK = 16
    for f in range(9):
        for tt in range(2):
            r = acc(f,tt); d = PK + 2*(2*f+tt)
            a(f'v_pk_mul_f32 {v(r,2)}, {v(r,2)}, s[58:59] op_sel_hi:[1,0]')
            a(f'v_pk_mul_f32 {v(r+2,2)}, {v(r+2,2)}, s[58:59] op_sel_hi:[1,0]')
            a(f'v_cvt_pk_bf16_f32 {v(d)}, {v(r)}, {v(r+1)}')
            a(f'v_cvt_pk_bf16_f32 {v(d+1)}, {v(r+2)}, {v(r+3)}')
            if f < 8:
                a(f'buffer_store_dwordx2 {v(d,2)}, {v(T2)}, s[4:7], s54 offen offset:{tt*256}{SC()}')
        if f < 7: a('s_add_u32 s54, s54, s55')
    a(f's_mul_i32 s54, s15, {KV_HEAD}')
    a(f's_mul_i32 s56, s14, {TILE_B}')
    a('s_add_u32 s54, s54, s56')
    a(f's_add_u32 s54, s54, {KHI_O}')
    a('s_lshl_b32 s56, s15, 13')
    a('s_lshl_b32 s57, s14, 7')
    a('s_add_u32 s56, s56, s57')
    a(f's_add_u32 s56, s56, {QHI_OFF}')
    a(f's_mov_b32 s57, {KV_HEAD}')
    a('s_cmp_eq_u32 s11, 0')
    a('s_cselect_b32 s54, s56, s54')
    a('s_cselect_b32 s55, 8192, s57')
    a(f'v_lshlrev_b32 {v(T4)}, 1, {v(T1)}')
    a(f'v_mul_lo_u32 {v(T4)}, {v(T4)}, s55')
    a(f'v_lshl_add_u32 {v(T4)}, {v(T0)}, 2, {v(T4)}')
    a('s_add_u32 s56, s54, s55')
    for tt in range(2):
        d = PK + 2*(16+tt)
        a(f'buffer_store_dword {v(d)}, {v(T4)}, s[4:7], s54 offen offset:{tt*64}{SC()}')
        a(f'buffer_store_dword {v(d+1)}, {v(T4)}, s[4:7], s56 offen offset:{tt*64}{SC()}')
    a('s_cmp_eq_u32 s11, 1')
    a('s_cbranch_scc0 L_epdone')
    N = 64
    for f in range(8):
        for tt in range(2):
            d = PK + 2*(2*f+tt); n = N + 2*f + tt
            a(f'v_dot2_f32_bf16 {v(n)}, {v(d)}, {v(d)}, 0')
    for f in range(8):
        for tt in range(2):
            d = PK + 2*(2*f+tt); n = N + 2*f + tt
            a(f'v_dot2_f32_bf16 {v(n)}, {v(d+1)}, {v(d+1)}, {v(n)}')
    HN = 80
    for tt in range(2):
        for b in range(2): a(f'v_dot2_f32_bf16 {v(HN+2*tt+b)}, {v(PK+2*(16+tt)+b)}, {v(PK+2*(16+tt)+b)}, 0')
    for j in range(4):
        a(f'v_cmp_eq_u32 vcc, {j}, {v(T1)}')
        a('s_nop 1')
        for b in range(2):
            for tt in range(2):
                n = N + 2*(2*j+b) + tt
                a(f'v_cndmask_b32 {v(84)}, 0, {v(HN+2*tt+b)}, vcc')
                a(f'v_add_f32 {v(n)}, {v(n)}, {v(84)}')
    R = 88
    for g in range(4):
        tt, h0 = g & 1, 4*(g >> 1)
        va, vb, vc, vd = [N + 2*(h0+k) + tt for k in range(4)]
        a('s_nop 0')
        a(f'v_permlane16_swap_b32 {v(va)}, {v(vb)}')
        a(f'v_permlane16_swap_b32 {v(vc)}, {v(vd)}')
        a('s_nop 0')
        a(f'v_add_f32 {v(va)}, {v(va)}, {v(vb)}')
        a(f'v_add_f32 {v(vc)}, {v(vc)}, {v(vd)}')
        a('s_nop 1')
        a(f'v_permlane32_swap_b32 {v(va)}, {v(vc)}')
        a('s_nop 0')
        a(f'v_add_f32 {v(R+g)}, {v(va)}, {v(vc)}')
    a(f'v_max_f32 {v(R)}, {v(R)}, {v(R+1)}')
    a(f'v_max_f32 {v(R+2)}, {v(R+2)}, {v(R+3)}')
    for sh in (8,4,2,1):
        a('s_nop 0')
        a(f'v_max_f32_dpp {v(R)}, {v(R)}, {v(R)} row_ror:{sh} row_mask:0xf bank_mask:0xf')
        a(f'v_max_f32_dpp {v(R+2)}, {v(R+2)}, {v(R+2)} row_ror:{sh} row_mask:0xf bank_mask:0xf')
    a(f'v_lshlrev_b32 {v(T4)}, 8, {v(T1)}')
    a('s_lshl_b32 s54, s15, 8')
    a('s_lshl_b32 s55, s14, 2')
    a('s_add_u32 s54, s54, s55')
    a(f's_add_u32 s54, s54, {NRM_OFF}')
    a(f'v_cmp_eq_u32 vcc, 0, {v(T0)}')
    a('s_and_saveexec_b64 s[40:41], vcc')
    a(f'buffer_store_dword {v(R)}, {v(T4)}, s[4:7], s54 offen{SC()}')
    a(f'buffer_store_dword {v(R+2)}, {v(T4)}, s[4:7], s54 offen offset:1024{SC()}')
    a('s_mov_b64 exec, s[40:41]')
    a('s_branch L_epdone')
    a('L_epV:')
    a(f'v_lshrrev_b32 {v(T4)}, 1, {v(T1)}')
    a(f'v_mul_u32_u24 {v(T4)}, 320, {v(T4)}')
    a(f'v_lshl_add_u32 {v(T4)}, {v(T3)}, 3, {v(T4)}')
    a(f'v_lshl_add_u32 {v(T2)}, {v(T0)}, 4, {v(T4)}')
    a(f's_mul_i32 s54, s15, {KV_HEAD}')
    a(f's_mul_i32 s56, s14, {TILE_B}')
    a('s_add_u32 s54, s54, s56')
    a(f's_add_u32 s54, s54, {V_O}')
    a('s_mov_b32 s56, s54')
    PK = 16
    for f in range(9):
        for tt in range(2):
            r = acc(f,tt); d = PK + 2*(2*f+tt)
            a(f'v_cvt_pk_bf16_f32 {v(d)}, {v(r)}, {v(r+1)}')
            a(f'v_cvt_pk_bf16_f32 {v(d+1)}, {v(r+2)}, {v(r+3)}')
            if f < 8: a(f'buffer_store_dwordx2 {v(d,2)}, {v(T2)}, s[4:7], s54 offen offset:{tt*640}{SC()}')
        if f < 7: a(f's_add_u32 s54, s54, {KV_HEAD}')
    a(f'v_lshrrev_b32 {v(T5)}, 1, {v(T0)}')
    a(f's_mov_b32 s55, {KV_HEAD}')
    a(f'v_mul_lo_u32 {v(T5)}, {v(T5)}, s55')
    a(f'v_and_b32 {v(T3)}, 1, {v(T0)}')
    a(f'v_lshl_add_u32 {v(T5)}, {v(T3)}, 4, {v(T5)}')
    a(f'v_add_u32 {v(T5)}, {v(T5)}, {v(T4)}')
    for tt in range(2):
        d = PK + 2*(16+tt)
        a(f'buffer_store_dwordx2 {v(d,2)}, {v(T5)}, s[4:7], s56 offen offset:{256+tt*640}{SC()}')
    a(f'v_lshrrev_b32 {v(T5)}, 3, {v(V_LANE)}')
    a(f'v_mul_lo_u32 {v(T5)}, {v(T5)}, s55')
    a(f'v_bfe_u32 {v(T3)}, {v(V_LANE)}, 2, 1')
    a(f'v_mul_u32_u24 {v(T3)}, 640, {v(T3)}')
    a(f'v_add_u32 {v(T5)}, {v(T5)}, {v(T3)}')
    a(f'v_bfe_u32 {v(T3)}, {v(V_LANE)}, 1, 1')
    a(f'v_mul_u32_u24 {v(T3)}, 320, {v(T3)}')
    a(f'v_add_u32 {v(T5)}, {v(T5)}, {v(T3)}')
    a(f'v_and_b32 {v(T3)}, 1, {v(V_LANE)}')
    a(f'v_lshl_add_u32 {v(T5)}, {v(T3)}, 4, {v(T5)}')
    a(f'v_cmp_eq_u32 vcc, 0, {v(T3)}')
    a(f'v_mov_b32 {v(T4)}, 0x3f803f80')
    a('s_nop 0')
    a(f'v_cndmask_b32 {v(56)}, 0, {v(T4)}, vcc')
    for k in range(1,4): a(f'v_mov_b32 {v(56+k)}, {v(56)}')
    a(f'buffer_store_dwordx4 {v(56,4)}, {v(T5)}, s[4:7], s56 offen offset:288{SC()}')
    a('L_epdone:')

def emit_gemm_producer(a):
    srd(a, 44, P_X, 2048*1152); srd(a, 48, P_WQKV, 576*3456)
    a('s_sub_u32 s12, s10, 4')
    a(f'v_lshrrev_b32 {v(T0)}, 3, {v(V_LANE)}')
    a(f'v_and_b32 {v(T1)}, 7, {v(V_LANE)}')
    a(f'v_xor_b32 {v(T1)}, {v(T1)}, {v(T0)}')
    a(f'v_mul_u32_u24 {v(PX)}, 1152, {v(T0)}')
    a(f'v_lshl_add_u32 {v(PX)}, {v(T1)}, 4, {v(PX)}')
    a(f's_mul_i32 s54, s8, {128*1152}')
    a(f's_mul_i32 s14, s12, {4*9216}')
    a('s_add_u32 s54, s54, s14')
    a(f's_mul_i32 s55, s11, 1152')
    a(f's_mul_i32 s14, s9, 288')
    a('s_add_u32 s55, s55, s14')
    a('s_lshl_b32 s56, s12, 12')
    a('s_lshl_b32 s57, s12, 10')
    a(f's_add_u32 s57, s57, {XS}')
    for s in range(5):
        a(f's_lshl_b32 s14, s12, 6')
        a(f's_add_u32 s14, s14, {256*s}')
        a(f'v_add_u32 {v(T0)}, s14, {v(V_LANE)}')
        a(f'v_mul_u32_u24 {v(T1)}, 3641, {v(T0)}')
        a(f'v_lshrrev_b32 {v(T1)}, 16, {v(T1)}')
        a(f'v_mul_u32_u24 {v(T2)}, 18, {v(T1)}')
        a(f'v_sub_u32 {v(T2)}, {v(T0)}, {v(T2)}')
        a(f'v_lshrrev_b32 {v(T3)}, 2, {v(T1)}')
        a(f'v_lshrrev_b32 {v(T4)}, 3, {v(T1)}')
        a(f'v_xor_b32 {v(T3)}, {v(T3)}, {v(T4)}')
        a(f'v_and_b32 {v(T3)}, 1, {v(T3)}')
        a(f'v_mul_u32_u24 {v(T3)}, 12, {v(T3)}')
        a(f'v_xor_b32 {v(T1)}, {v(T1)}, {v(T3)}')
        a(f'v_mul_u32_u24 {v(T1)}, 3456, {v(T1)}')
        a(f'v_lshl_add_u32 {v(PW+s)}, {v(T2)}, 4, {v(T1)}')
    a('s_cmp_ge_u32 s12, 2')
    a('s_cselect_b64 vcc, -1, 0')
    a(f'v_mov_b32 {v(T0)}, 0x7f000000')
    a(f'v_cndmask_b32 {v(PW+4)}, {v(PW+4)}, {v(T0)}, vcc')
    a('s_mov_b32 s53, 0')
    def issue(a):
        a(f's_add_u32 s14, s53, s56')
        for i in range(4):
            a(f's_add_u32 m0, s14, {i*1024}')
            a(f's_add_u32 s15, s54, {i*9216}')
            a(f'buffer_load_dwordx4 {v(PX)}, s[44:47], s15 offen lds')
        a(f's_add_u32 s14, s53, s57')
        for s in range(5):
            if s < 4: a(f's_add_u32 m0, s14, {s*4096}')
            else:
                a(f's_add_u32 m0, s14, {s*4096}')
                a(f's_cmp_ge_u32 s12, 2')
                a(f's_cselect_b32 m0, {DUMMY}, m0')
            a('s_nop 0')
            a(f'buffer_load_dwordx4 {v(PW+s)}, s[48:51], s55 offen lds')
        a(f's_add_u32 s54, s54, 128')
        a(f's_add_u32 s55, s55, {64*3456}')
        a(f's_add_u32 s53, s53, {STAGE}')
        a(f's_cmp_eq_u32 s53, {4*STAGE}')
        a(f's_cselect_b32 s53, 0, s53')
    a('s_mov_b32 s52, 0')
    stamp(a, 'p_addr')
    a(f'L_pinit:')
    issue(a)
    a('s_add_u32 s52, s52, 1')
    a('s_cmp_lt_u32 s52, 2')
    a(f's_cbranch_scc1 L_pinit')
    a('s_waitcnt vmcnt(9)')
    a('s_barrier')
    stamp(a, 'p_B0')
    issue(a);
    a('s_add_u32 s52, s52, 1')
    a('L_ploop0:')
    issue(a)
    a('s_add_u32 s52, s52, 1')
    a('s_waitcnt vmcnt(18)')
    a('s_barrier')
    a('s_cmp_lt_u32 s52, 9')
    a(f's_cbranch_scc1 L_ploop0')
    a('s_waitcnt vmcnt(9)')
    a('s_barrier')
    a('s_waitcnt vmcnt(0)')
    a('s_barrier')
    a('s_barrier')
    stamp(a, 'loop')
```

```python
from common import *
from syncp import emit_flag, emit_poll
import phX
V_LANE=1; V_T0=2; V_T1=3; V_T2=4; V_T3=5
V_QLO=112; V_QHI=116; V_NRM=118; V_DOFF=119; V_KLO=16; V_KHI=20; V_IDX=22
V_AK=23; V_AH=24; V_AV=25
V_V0=28; V_V1=36; V_S0=48; V_S1=64; V_ACC=80
THRESH=0x42200000
FLAG_LDS=163584
PRIO=6

def emit_tile(a, j, barrier=None, pre=None):
    cur = V_S0 if j % 2 == 0 else V_S1
    oth = V_S1 if j % 2 == 0 else V_S0
    vcur = V_V0 if j % 2 == 0 else V_V1
    voth = V_V1 if j % 2 == 0 else V_V0
    E = lambda lo, hi: [a(f'v_exp_f32 {v(cur+r)}, {v(cur+r)}') for r in range(lo, hi)]
    if pre: pre(a)
    E(0,4)
    a(f'v_smfmac_f32_32x32x32_bf16 {v(V_ACC,16)}, {v(voth+4,4)}, {v(oth+8,8)}, {v(V_IDX)}')
    E(4,8)
    a(f's_waitcnt lgkmcnt(0)')
    a(f'v_mfma_f32_32x32x16_bf16 {v(oth,16)}, {v(V_KLO,4)}, {v(V_QLO,4)}, 0')
    E(8,12)
    a(f'v_mfma_f32_32x32x8bf16_1k {v(oth,16)}, {v(V_KHI,2)}, {v(V_QHI,2)}, {v(oth,16)}')
    if barrier: barrier(a)
    a(f'ds_read_b128 {v(V_KLO,4)}, {v(V_AK)} offset:{(j+2)*TILE_B+KLO_O}')
    a(f'ds_read_b32 {v(V_KHI)}, {v(V_AH)} offset:{(j+2)*TILE_B}')
    a(f'ds_read_b128 {v(voth,4)}, {v(V_AV)} offset:{(j+1)*TILE_B}')
    a(f'ds_read_b128 {v(voth+4,4)}, {v(V_AV)} offset:{(j+1)*TILE_B+640}')
    E(12,16)
    a(f'v_smfmac_f32_32x32x32_bf16 {v(V_ACC,16)}, {v(vcur,4)}, {v(cur,8)}, {v(V_IDX)}')

def emit_phB_ids(a):
    a('s_and_b32 s12, s2, 7')
    a('s_lshr_b32 s13, s2, 3')
    a('s_lshr_b32 s14, s13, 3')
    a('s_lshl_b32 s60, s12, 2')
    a('s_add_u32 s60, s60, s14')
    a('s_and_b32 s61, s13, 7')

def emit_mid(a):
    a('s_cmp_eq_u32 s32, 1')
    a('s_cbranch_scc0 L_nowof')
    phX.emit_wof(a)
    a('L_nowof:')
    a('s_lshr_b32 s14, s60, 3')
    a('s_lshl_b32 s14, s14, 8')
    a('s_bfe_u32 s15, s2, 0x20003')
    a('s_lshl_b32 s15, s15, 10')
    a('s_add_u32 s14, s14, s15')
    a(f's_add_u32 s14, s14, {F1_OFF}')
    emit_poll(a, 's14', 48, wave=7)
    a('s_barrier')
    stamp(a, 'f1wait')
    a(f'v_lshlrev_b32 {v(V_DOFF)}, 4, {v(V_LANE)}')
    a('s_lshl_b32 s15, s61, 3')
    a('s_add_u32 s15, s15, s10')
    a('s_lshl_b32 s16, s60, 16')
    a('s_lshl_b32 s17, s15, 10')
    a('s_add_u32 s16, s16, s17')
    a(f's_add_u32 s16, s16, {QLO_OFF}')
    a('s_lshl_b32 s17, s60, 13')
    a('s_lshl_b32 s18, s15, 7')
    a('s_add_u32 s17, s17, s18')
    a(f's_add_u32 s17, s17, {QHI_OFF}')
    a(f'v_and_b32 {v(V_T0)}, 31, {v(V_LANE)}')
    a(f'v_lshlrev_b32 {v(V_T0)}, 2, {v(V_T0)}')
    a(f'v_lshlrev_b32 {v(V_T2)}, 2, {v(V_LANE)}')
    a('s_lshl_b32 s18, s60, 8')
    a(f's_add_u32 s18, s18, {NRM_OFF}')
    a(f'buffer_load_dwordx4 {v(V_QLO,4)}, {v(V_DOFF)}, s[4:7], s16 offen{SL()}')
    a(f'buffer_load_dword {v(V_QHI)}, {v(V_T0)}, s[4:7], s17 offen{SL()}')
    a(f'buffer_load_dword {v(V_NRM)}, {v(V_T2)}, s[4:7], s18 offen{SL()}')
    a(f's_mul_i32 s62, s60, {KV_HEAD}')
    a('s_lshl_b32 s63, s10, 10')
    a('s_add_u32 s62, s62, s63')
    emit_dma(a, 8, 'L_dma0')

def emit_dma(a, n, lab):
    a(f's_mov_b32 s22, {n}')
    a(f'{lab}:')
    a('s_mov_b32 m0, s63')
    a('s_add_u32 s63, s63, 8192')
    a(f'buffer_load_dwordx4 {v(V_DOFF)}, s[4:7], s62 offen{SL()} lds')
    a('s_add_u32 s62, s62, 8192')
    a('s_sub_u32 s22, s22, 1')
    a('s_cmp_lg_u32 s22, 0')
    a(f's_cbranch_scc1 {lab}')

def emit_phB(a, prefetch, after_bar):
    a(f'v_lshlrev_b32 {v(V_DOFF)}, 4, {v(V_LANE)}')
    emit_dma(a, 11, 'L_dma1')
    a(f'v_lshlrev_b32 {v(V_AK)}, 4, {v(V_LANE)}')
    a(f'v_and_b32 {v(V_T0)}, 31, {v(V_LANE)}')
    a(f'v_lshlrev_b32 {v(V_AH)}, 2, {v(V_T0)}')
    a(f'v_mov_b32 {v(V_IDX)}, 0xdddddddd')
    a(f'v_mov_b32 {v(V_KHI+1)}, 0x3f803f80')
    a(f'v_add_u32 {v(V_AH)}, {KHI_O}, {v(V_AH)}')
    a(f'v_and_b32 {v(V_T0)}, 31, {v(V_LANE)}')
    a(f'v_subrev_u32 {v(V_T3)}, 16, {v(V_T0)}')
    a(f'v_cmp_gt_u32 vcc, 20, {v(V_T0)}')
    a(f'v_lshrrev_b32 {v(V_AV)}, 5, {v(V_LANE)}')
    a(f'v_mul_u32_u24 {v(V_AV)}, 320, {v(V_AV)}')
    a(f'v_cndmask_b32 {v(V_T0)}, {v(V_T3)}, {v(V_T0)}, vcc')
    a(f'v_lshlrev_b32 {v(V_T0)}, 4, {v(V_T0)}')
    a(f'v_add3_u32 {v(V_AV)}, {v(V_AV)}, {v(V_T0)}, 0')
    a(f'v_add_u32 {v(V_AV)}, {V_O}, {v(V_AV)}')
    for r in range(16): a(f'v_mov_b32 {v(V_ACC+r)}, 0')
    for r in range(8): a(f'v_mov_b32 {v(V_S1+8+r)}, 0')
    for r in range(4): a(f'v_mov_b32 {v(V_V1+4+r)}, 0')
    a('s_waitcnt vmcnt(11)')
    a(f'v_cmp_gt_u32 vcc, 32, {v(V_LANE)}')
    for sh in (8,4,2,1):
        a(f's_nop 1')
        a(f'v_max_f32_dpp {v(V_NRM)}, {v(V_NRM)}, {v(V_NRM)} row_ror:{sh} row_mask:0xf bank_mask:0xf')
    a(f'v_cndmask_b32 {v(V_QHI)}, 0, {v(V_QHI)}, vcc')
    a(f'v_mov_b32 {v(V_T2)}, 0')
    a(f'v_readlane_b32 s26, {v(V_NRM)}, 0')
    a(f'v_readlane_b32 s27, {v(V_NRM)}, 16')
    a(f'v_readlane_b32 s28, {v(V_NRM)}, 32')
    a(f'v_readlane_b32 s29, {v(V_NRM)}, 48')
    for r in range(4): a(f'v_dot2_f32_bf16 {v(V_T2)}, {v(V_QLO+r)}, {v(V_QLO+r)}, {v(V_T2)}')
    a(f'v_dot2_f32_bf16 {v(V_T2)}, {v(V_QHI)}, {v(V_QHI)}, {v(V_T2)}')
    a('s_max_u32 s26, s26, s27')
    a('s_max_u32 s28, s28, s29')
    a('s_max_u32 s26, s26, s28')
    a('s_nop 0')
    a(f'v_mov_b32 {v(V_T3)}, {v(V_T2)}')
    a('s_nop 1')
    a(f'v_permlane32_swap_b32 {v(V_T2)}, {v(V_T3)}')
    a('s_nop 1')
    a(f'v_add_f32 {v(V_T2)}, {v(V_T2)}, {v(V_T3)}')
    a(f'v_mul_f32 {v(V_T1)}, s26, {v(V_T2)}')
    a(f'v_sqrt_f32 {v(V_T1)}, {v(V_T1)}')
    a(f'v_mov_b32 {v(V_T3)}, {THRESH}')
    a(f'v_cmp_nle_f32 s[30:31], {v(V_T1)}, {v(V_T3)}')
    a(f'v_add_u32 {v(V_T1)}, 0x1ffff, {v(V_T1)}')
    a(f'v_lshrrev_b32 {v(V_T1)}, 16, {v(V_T1)}')
    a(f'v_or_b32 {v(V_T1)}, 0x8000, {v(V_T1)}')
    a(f'v_cndmask_b32 {v(V_QHI+1)}, 0, {v(V_T1)}, vcc')
    a('s_cmp_lg_u64 s[30:31], 0')
    a('s_cselect_b32 s30, 1, 0')
    a(f'v_mov_b32 {v(V_T1)}, s30')
    a(f's_lshl_b32 s31, s10, 2')
    a(f'v_mov_b32 {v(V_T2)}, s31')
    a(f'v_add_u32 {v(V_T2)}, {FLAG_LDS}, {v(V_T2)}')
    a(f'ds_write_b32 {v(V_T2)}, {v(V_T1)}')
    a('s_waitcnt lgkmcnt(0)')
    a('s_barrier')
    after_bar(a)
    a(f'v_mov_b32 {v(V_T2)}, {FLAG_LDS}')
    a(f'ds_read_b128 {v(V_S0,4)}, {v(V_T2)}')
    a(f'ds_read_b128 {v(V_S0+4,4)}, {v(V_T2)} offset:16')
    a('s_waitcnt lgkmcnt(0)')
    a(f'v_or3_b32 {v(V_S0)}, {v(V_S0)}, {v(V_S0+1)}, {v(V_S0+2)}')
    a(f'v_or3_b32 {v(V_S0+3)}, {v(V_S0+3)}, {v(V_S0+4)}, {v(V_S0+5)}')
    a(f'v_or3_b32 {v(V_S0)}, {v(V_S0)}, {v(V_S0+6)}, {v(V_S0+7)}')
    a(f'v_or_b32 {v(V_S0)}, {v(V_S0)}, {v(V_S0+3)}')
    a('s_nop 0')
    a(f'v_readfirstlane_b32 s30, {v(V_S0)}')
    a('s_cmp_lg_u32 s30, 0')
    a(f's_cbranch_scc1 L_fb')
    a(f'L_fbret:')
    stamp(a, 'kv0')
    a(f'ds_read_b128 {v(V_KLO,4)}, {v(V_AK)} offset:{KLO_O}')
    a(f'ds_read_b32 {v(V_KHI)}, {v(V_AH)}')
    a(f's_waitcnt lgkmcnt(0)')
    a(f'v_mfma_f32_32x32x16_bf16 {v(V_S0,16)}, {v(V_KLO,4)}, {v(V_QLO,4)}, 0')
    a(f's_nop 9')
    a(f'v_mfma_f32_32x32x8bf16_1k {v(V_S0,16)}, {v(V_KHI,2)}, {v(V_QHI,2)}, {v(V_S0,16)}')
    a(f'ds_read_b128 {v(V_KLO,4)}, {v(V_AK)} offset:{TILE_B+KLO_O}')
    a(f'ds_read_b32 {v(V_KHI)}, {v(V_AH)} offset:{TILE_B}')
    a(f'ds_read_b128 {v(V_V0,4)}, {v(V_AV)}')
    a(f'ds_read_b128 {v(V_V0+4,4)}, {v(V_AV)} offset:640')
    a('s_nop 7')
    a('s_setprio 1')
    a('s_mov_b32 s23, 0')
    a(f'L_loop:')
    def barrier(a):
        a('s_cmp_eq_u32 s23, 2')
        a(f's_cbranch_scc0 L_w_j')
        a('s_waitcnt vmcnt(0)')
        a('s_barrier')
        prefetch(a)
        a(f'L_w_j:')
    def mkpre(p):
        def pre(a):
            lab = f'L_p{p}'
            a('s_cmp_ge_u32 s10, 4')
            a(f's_cbranch_scc1 {lab}')
            a(f's_setprio {p}')
            a(f'{lab}:')
        return pre
    for j in range(8):
        pre = None
        if PRIO is not None:
            if j == 0: pre = mkpre(2)
            if j == PRIO: pre = mkpre(0)
        emit_tile(a, j, barrier=barrier if j == 6 else None, pre=pre)
    a(f'v_add_u32 {v(V_AK)}, {8*TILE_B}, {v(V_AK)}')
    a(f'v_add_u32 {v(V_AH)}, {8*TILE_B}, {v(V_AH)}')
    a(f'v_add_u32 {v(V_AV)}, {8*TILE_B}, {v(V_AV)}')
    a('s_add_u32 s23, s23, 1')
    a('s_cmp_lt_u32 s23, 8')
    a(f's_cbranch_scc1 L_loop')
    a('s_setprio 0')
    stamp(a, 'attnloop')
    a('s_nop 1')
    a(f'v_smfmac_f32_32x32x32_bf16 {v(V_ACC,16)}, {v(V_V1+4,4)}, {v(V_S1+8,8)}, {v(V_IDX)}')
    a('s_waitcnt lgkmcnt(0)')
    a('s_nop 15')
    a(f'v_mov_b32 {v(V_T0)}, {v(V_ACC+10)}')
    a(f'v_mov_b32 {v(V_T1)}, {v(V_ACC+10)}')
    a('s_nop 1')
    a(f'v_permlane32_swap_b32 {v(V_T0)}, {v(V_T1)}')
    a('s_nop 1')
    a(f'v_rcp_f32 {v(V_T0)}, {v(V_T0)}')
    a('s_nop 0')
    for r in range(10): a(f'v_mul_f32 {v(V_ACC+r)}, {v(V_ACC+r)}, {v(V_T0)}')
    OP = 8
    for p in range(5): a(f'v_cvt_pk_bf16_f32 {v(OP+p)}, {v(V_ACC+2*p)}, {v(V_ACC+2*p+1)}')
    a('s_nop 1')
    a(f'v_permlane32_swap_b32 {v(OP)}, {v(OP+2)}')
    a(f'v_permlane32_swap_b32 {v(OP+1)}, {v(OP+3)}')
    a('s_lshl_b32 s15, s61, 3')
    a('s_add_u32 s15, s15, s10')
    a(f'v_and_b32 {v(V_T1)}, 31, {v(V_LANE)}')
    a(f'v_lshrrev_b32 {v(V_T2)}, 5, {v(V_LANE)}')
    a(f'v_lshlrev_b32 {v(V_T3)}, 5, {v(V_T1)}')
    a(f'v_lshl_add_u32 {v(V_T3)}, {v(V_T2)}, 4, {v(V_T3)}')
    a('s_lshl_b32 s16, s60, 16')
    a('s_lshl_b32 s17, s15, 10')
    a('s_add_u32 s16, s16, s17')
    a(f's_add_u32 s16, s16, {OLO_OFF}')
    a(f'buffer_store_dwordx4 {v(OP,4)}, {v(V_T3)}, s[4:7], s16 offen{SC()}')
    a(f'v_lshlrev_b32 {v(V_T3)}, 7, {v(V_T1)}')
    a('s_lshl_b32 s16, s15, 12')
    a('s_lshl_b32 s17, s60, 2')
    a('s_add_u32 s16, s16, s17')
    a(f's_add_u32 s16, s16, {OHI_OFF}')
    a(f'v_cmp_gt_u32 vcc, 32, {v(V_LANE)}')
    a('s_and_saveexec_b64 s[24:25], vcc')
    a(f'buffer_store_dword {v(OP+4)}, {v(V_T3)}, s[4:7], s16 offen{SC()}')
    a('s_mov_b64 exec, s[24:25]')

def emit_phB_fallback(a):
    a(f'L_fb:')
    a('s_waitcnt vmcnt(0)')
    a('s_barrier')
    a(f'v_mov_b32 {v(V_QHI+1)}, 0')
    a(f'v_mov_b32 {v(V_T0)}, 0xff800000')
    a(f'v_mov_b32 {v(V_T1)}, {v(V_AK)}')
    a(f'v_mov_b32 {v(V_T2)}, {v(V_AH)}')
    a('s_mov_b32 s23, 64')
    a(f'L_fbl:')
    a(f'ds_read_b128 {v(V_KLO,4)}, {v(V_T1)}')
    a(f'ds_read_b32 {v(V_KHI)}, {v(V_T2)}')
    a('s_waitcnt lgkmcnt(0)')
    a(f'v_mfma_f32_32x32x16_bf16 {v(V_S0,16)}, {v(V_KLO,4)}, {v(V_QLO,4)}, 0')
    a('s_nop 15')
    a(f'v_mfma_f32_32x32x8bf16_1k {v(V_S0,16)}, {v(V_KHI,2)}, {v(V_QHI,2)}, {v(V_S0,16)}')
    a(f'v_add_u32 {v(V_T1)}, {TILE_B}, {v(V_T1)}')
    a(f'v_add_u32 {v(V_T2)}, {TILE_B}, {v(V_T2)}')
    a('s_nop 15')
    for r in range(0,16,2): a(f'v_max3_f32 {v(V_T0)}, {v(V_S0+r)}, {v(V_S0+r+1)}, {v(V_T0)}')
    a('s_sub_u32 s23, s23, 1')
    a('s_cmp_lg_u32 s23, 0')
    a(f's_cbranch_scc1 L_fbl')
    a(f'v_mov_b32 {v(V_T1)}, {v(V_T0)}')
    a('s_nop 1')
    a(f'v_permlane32_swap_b32 {v(V_T0)}, {v(V_T1)}')
    a('s_nop 1')
    a(f'v_max_f32 {v(V_T0)}, {v(V_T0)}, {v(V_T1)}')
    a(f'v_sub_f32 {v(V_T0)}, 0, {v(V_T0)}')
    a(f'v_and_b32 {v(V_T1)}, 0xffff0000, {v(V_T0)}')
    a(f'v_sub_f32 {v(V_T0)}, {v(V_T0)}, {v(V_T1)}')
    a(f'v_and_b32 {v(V_T2)}, 0xffff0000, {v(V_T0)}')
    a(f'v_sub_f32 {v(V_T0)}, {v(V_T0)}, {v(V_T2)}')
    a(f'v_lshrrev_b32 {v(V_T0)}, 16, {v(V_T0)}')
    a(f'v_lshrrev_b32 {v(V_T1)}, 16, {v(V_T1)}')
    a(f'v_or_b32 {v(V_T1)}, {v(V_T1)}, {v(V_T2)}')
    a(f'v_cmp_gt_u32 vcc, 32, {v(V_LANE)}')
    a('s_nop 1')
    a(f'v_cndmask_b32 {v(V_QHI+1)}, {v(V_T0)}, {v(V_T1)}, vcc')
    a(f's_branch L_fbret')
```

```python
from common import *
from syncp import emit_flag, emit_poll
HC_COPY = 4160
UB_O = 4*HC_COPY
CH_STRIDE = 23040
RED_O = 3*CH_STRIDE
LDS0 = 70144
V_LANE=1; T0=2; T1=3; T2=4; T3=5; T4=6; T5=7
AA=8; AB=9; DG=10
BF0=16; AF0=32; BF1=48; AF1=64
Y=80; YS=96
def emit_stage(a):
    a('s_cmp_lt_u32 s10, 4')
    a('s_cbranch_scc1 L_stage_skip')
    srd(a, 24, P_SSMK, 576*4096)
    H = lambda ch: 112 + 6*ch
    U = lambda ch: 132 + 4*ch
    a(f'v_subrev_u32 {v(T5)}, 256, v0')
    a(f's_lshl_b32 s42, s34, 12')
    a(f's_sub_u32 s42, s42, 8')
    a(f'v_lshlrev_b32 {v(T0)}, 4, {v(T5)}')
    a(f'v_add_u32 {v(T1)}, s42, {v(T0)}')
    for ch in range(3):
        if ch == 2:
            a('s_cmp_eq_u32 s35, 3')
            a('s_cbranch_scc0 L_hl_skip')
        a(f'v_add_u32 {v(T2)}, 16, {v(T1)}')
        a(f'buffer_load_dwordx4 {v(H(ch),4)}, {v(T1)}, s[24:27], 0 offen')
        a(f'buffer_load_dwordx2 {v(H(ch)+4,2)}, {v(T2)}, s[24:27], 0 offen')
        if ch < 2: a(f'v_add_u32 {v(T1)}, 4096, {v(T1)}')
    a('L_hl_skip:')
    a('s_lshr_b32 s46, s2, 3')
    a('s_lshl_b32 s46, s46, 8')
    a(f's_add_u32 s46, s46, {F0_OFF}')
    emit_poll(a, 's46', 64, wave=None)
    stamp(a, 'f0wait')
    a(f's_mul_i32 s43, s34, 7282')
    a(f's_lshr_b32 s43, s43, 20')
    a(f's_mul_i32 s48, s43, 144')
    a(f's_sub_u32 s48, s34, s48')
    a(f's_mul_i32 s43, s43, 9216')
    a(f's_lshl_b32 s48, s48, 6')
    a(f's_add_u32 s43, s43, s48')
    a(f's_add_u32 s43, s43, {UR_OFF + 63*4*9216}')
    a(f'v_lshrrev_b32 {v(T0)}, 2, {v(T5)}')
    a(f'v_and_b32 {v(T1)}, 3, {v(T5)}')
    a(f'v_mul_u32_u24 {v(T2)}, {4*9216}, {v(T0)}')
    a(f'v_lshlrev_b32 {v(T3)}, 4, {v(T1)}')
    a(f'v_sub_u32 {v(T2)}, {v(T3)}, {v(T2)}')
    a(f'v_add_u32 {v(T2)}, s43, {v(T2)}')
    a(f'v_mul_u32_u24 {v(T4)}, 80, {v(T0)}')
    a(f'v_add_u32 {v(T4)}, {v(T4)}, {v(T3)}')
    a(f'v_add_u32 {v(T4)}, {LDS0+UB_O}, {v(T4)}')
    for ch in range(3):
        if ch == 2:
            a('s_cmp_eq_u32 s35, 3')
            a('s_cbranch_scc0 L_ul_skip')
        a(f'buffer_load_dwordx4 {v(U(ch),4)}, {v(T2)}, s[4:7], 0 offen offset:{64*ch}{SL()}')
    a('L_ul_skip:')
    a(f'v_mov_b32 {v(24)}, 0\nv_mov_b32 {v(25)}, 0\nv_mov_b32 {v(26)}, 0\nv_mov_b32 {v(27)}, 0')
    a(f'v_mul_u32_u24 {v(T1)}, {HC_COPY}, {v(T0)}')
    a(f'v_add_u32 {v(T1)}, {v(T1)}, {v(T3)}')
    a(f'v_add_u32 {v(T1)}, {LDS0}, {v(T1)}')
    a(f'v_cmp_gt_u32 vcc, 16, {v(T5)}')
    a(f's_and_saveexec_b64 s[44:45], vcc')
    for ch in range(3): a(f'ds_write_b128 {v(T1)}, {v(24,4)} offset:{ch*CH_STRIDE}')
    a(f's_mov_b64 exec, s[44:45]')
    a(f'v_cmp_gt_u32 vcc, 60, {v(T5)}')
    a(f's_and_saveexec_b64 s[44:45], vcc')
    for ch in range(3): a(f'ds_write_b128 {v(T4)}, {v(24,4)} offset:{ch*CH_STRIDE+64*80}')
    a(f's_mov_b64 exec, s[44:45]')
    a(f'v_lshlrev_b32 {v(T0)}, 4, {v(T5)}')
    a(f'v_add_u32 {v(T0)}, {LDS0+64}, {v(T0)}')
    a(f'v_cmp_ne_u32 vcc, 0, {v(T5)}')
    a('s_waitcnt vmcnt(0)')
    for ch in range(3):
        if ch == 2:
            a('s_cmp_eq_u32 s35, 3')
            a('s_cbranch_scc0 L_stage_skip')
        h = H(ch)
        for i in range(2): a(f'v_cndmask_b32 {v(h+i)}, 0, {v(h+i)}, vcc')
        for i in range(5): a(f'v_alignbit_b32 {v(24+i)}, {v(h+1+i)}, {v(h+i)}, 16')
        o = ch*CH_STRIDE
        a(f'ds_write_b128 {v(T0)}, {v(24,4)} offset:{o}')
        for i in range(4): a(f'v_mov_b32 {v(32+i)}, {v(h+1+i)}')
        for i in range(4): a(f'v_mov_b32 {v(36+i)}, {v(25+i)}')
        a(f'ds_write_b128 {v(T0)}, {v(32,4)} offset:{o+HC_COPY}')
        a(f'ds_write_b128 {v(T0)}, {v(36,4)} offset:{o+2*HC_COPY}')
        a(f'ds_write_b128 {v(T0)}, {v(h+2,4)} offset:{o+3*HC_COPY}')
        a(f'ds_write_b128 {v(T4)}, {v(U(ch),4)} offset:{o}')
    a('L_stage_skip:')

def emit_conv(a, mid):
    a('s_mov_b32 s49, s10')
    a('s_lshl_b32 s50, s35, 2')
    a('s_mov_b32 s51, 0')
    a(f'L_unit:')
    a('s_lshr_b32 s39, s49, 2')
    a('s_bfe_u32 s52, s49, 0x10001')
    a('s_and_b32 s53, s49, 1')
    a(f's_mul_i32 s41, s39, {CH_STRIDE}')
    a(f's_add_u32 s41, s41, {LDS0}')
    a(f'v_and_b32 {v(T0)}, 15, {v(V_LANE)}')
    a(f'v_lshrrev_b32 {v(T1)}, 4, {v(V_LANE)}')
    a(f'v_sub_u32 {v(T2)}, 15, {v(T0)}')
    a(f'v_mul_u32_u24 {v(T2)}, 80, {v(T2)}')
    a(f'v_lshl_add_u32 {v(T2)}, {v(T1)}, 4, {v(T2)}')
    a(f's_mul_i32 s54, s53, 640')
    a(f's_add_u32 s54, s54, s41')
    a(f's_add_u32 s54, s54, {UB_O}')
    a(f'v_add_u32 {v(AB)}, s54, {v(T2)}')
    a(f'v_lshrrev_b32 {v(T2)}, 2, {v(T0)}')
    a(f'v_mul_u32_u24 {v(T2)}, {HC_COPY}, {v(T2)}')
    a(f'v_lshl_add_u32 {v(T2)}, {v(T1)}, 4, {v(T2)}')
    a(f'v_and_b32 {v(T3)}, 3, {v(V_LANE)}')
    a(f'v_lshl_add_u32 {v(T2)}, {v(T3)}, 3, {v(T2)}')
    a(f's_lshl_b32 s54, s52, 5')
    a(f's_lshl_b32 s55, s53, 9')
    a(f's_add_u32 s54, s54, s55')
    a(f's_add_u32 s54, s54, s41')
    a(f's_add_u32 s54, s54, 8')
    a(f'v_add_u32 {v(AA)}, s54, {v(T2)}')
    for r in range(16): a(f'v_mov_b32 {v(Y+r)}, 0')
    def reads(B, A):
        for j in range(4): a(f'ds_read_b128 {v(B+4*j,4)}, {v(AB)} offset:{1280*(3-j)}')
        for q in range(4):
            for e in range(2): a(f'ds_read_b64_tr_b16 {v(A+4*q+2*e,2)}, {v(AA)} offset:{1024*q+8*e}')
        a(f'v_add_u32 {v(AB)}, 80, {v(AB)}')
        a(f'v_add_u32 {v(AA)}, 64, {v(AA)}')
    def mfmas(B, A):
        for q in range(4):
            for jt in range(q,4):
                a(f'v_mfma_f32_16x16x32_bf16 {v(Y+4*jt,4)}, {v(A+4*q,4)}, {v(B+4*(jt-q),4)}, {v(Y+4*jt,4)}')
    reads(BF0, AF0)
    a('s_cmp_eq_u32 s53, 0')
    a(f's_cbranch_scc0 L_nod')
    a('s_add_u32 s40, s34, s39')
    a('s_lshl_b32 s40, s40, 1')
    a('s_and_b32 s55, s40, 0xfffffffc')
    a(f's_load_dword s56, s[{P_D}:{P_D+1}], s55')
    a(f's_lshl_b32 s54, s52, 4')
    a(f's_sub_u32 s54, 31, s54')
    a(f'v_sub_u32 {v(T2)}, s54, {v(T0)}')
    a(f'v_lshlrev_b32 {v(T3)}, 3, {v(T1)}')
    a(f'v_sub_u32 {v(T2)}, {v(T2)}, {v(T3)}')
    a('s_waitcnt lgkmcnt(0)')
    a('s_bitcmp1_b32 s40, 1')
    a('s_cselect_b32 s57, 16, 0')
    a('s_lshr_b32 s56, s56, s57')
    a('s_and_b32 s56, s56, 0xffff')
    a('s_lshl_b32 s57, s56, 16')
    a(f'v_mov_b32 {v(T4)}, s56')
    a(f'v_mov_b32 {v(T5)}, s57')
    for rho in range(4):
        a(f'v_cmp_eq_u32 vcc, {2*rho}, {v(T2)}')
        a(f'v_cmp_eq_u32 s[58:59], {2*rho+1}, {v(T2)}')
        a('s_nop 1')
        a(f'v_cndmask_b32 {v(14)}, 0, {v(T4)}, vcc')
        a(f'v_cndmask_b32 {v(15)}, 0, {v(T5)}, s[58:59]')
        a(f'v_or_b32 {v(DG+rho)}, {v(14)}, {v(15)}')
    a('s_nop 1')
    for jt in range(4):
        a(f'v_mfma_f32_16x16x32_bf16 {v(Y+4*jt,4)}, {v(DG,4)}, {v(BF0+4*jt,4)}, {v(Y+4*jt,4)}')
    a(f'L_nod:')
    a('s_mov_b32 s54, 4')
    a(f'L_r:')
    a('s_waitcnt lgkmcnt(0)')
    reads(BF1, AF1)
    mfmas(BF0, AF0)
    a('s_waitcnt lgkmcnt(0)')
    reads(BF0, AF0)
    mfmas(BF1, AF1)
    a('s_sub_u32 s54, s54, 1')
    a('s_cmp_eq_u32 s54, 2')
    a('s_cbranch_scc0 L_nomid')
    a('s_cmp_eq_u32 s51, 0')
    a('s_cbranch_scc0 L_nomid')
    mid(a)
    a('L_nomid:')
    a('s_cmp_lg_u32 s54, 0')
    a(f's_cbranch_scc1 L_r')
    a('s_waitcnt lgkmcnt(0)')
    a('s_nop 7')
    a('s_cmp_eq_u32 s53, 0')
    a(f's_cbranch_scc1 L_keep')
    a('s_lshr_b32 s54, s49, 1')
    a('s_lshl_b32 s54, s54, 12')
    a(f's_add_u32 s54, s54, {RED_O+LDS0}')
    a(f'v_lshlrev_b32 {v(T2)}, 4, {v(V_LANE)}')
    a(f'v_add_u32 {v(T2)}, s54, {v(T2)}')
    for jt in range(4): a(f'ds_write_b128 {v(T2)}, {v(Y+4*jt,4)} offset:{1024*jt}')
    a(f's_branch L_next')
    a(f'L_keep:')
    a('s_cmp_eq_u32 s51, 0')
    a(f's_cbranch_scc0 L_next')
    for r in range(16): a(f'v_mov_b32 {v(YS+r)}, {v(Y+r)}')
    a(f'L_next:')
    a('s_add_u32 s49, s49, 8')
    a('s_add_u32 s51, s51, 1')
    a('s_cmp_lt_u32 s49, s50')
    a(f's_cbranch_scc1 L_unit')
    a('s_waitcnt lgkmcnt(0)')
    a('s_barrier')
    stamp(a, 'convmm')
    a('s_bitcmp1_b32 s10, 0')
    a(f's_cbranch_scc1 L_cdone')
    a('s_mov_b32 s49, s10')
    a(f'L_fin:')
    a('s_lshr_b32 s54, s49, 1')
    a('s_lshl_b32 s54, s54, 12')
    a(f's_add_u32 s54, s54, {RED_O+LDS0}')
    a(f'v_lshlrev_b32 {v(T2)}, 4, {v(V_LANE)}')
    a(f'v_add_u32 {v(T2)}, s54, {v(T2)}')
    for jt in range(4): a(f'ds_read_b128 {v(BF0+4*jt,4)}, {v(T2)} offset:{1024*jt}')
    a('s_lshr_b32 s39, s49, 2')
    a('s_add_u32 s40, s34, s39')
    a('s_lshl_b32 s40, s40, 12')
    a('s_bfe_u32 s52, s49, 0x10001')
    a('s_lshl_b32 s52, s52, 5')
    a('s_add_u32 s40, s40, s52')
    a(f's_add_u32 s40, s40, {Y_OFF}')
    a(f'v_and_b32 {v(T0)}, 15, {v(V_LANE)}')
    a(f'v_lshrrev_b32 {v(T1)}, 4, {v(V_LANE)}')
    a(f'v_lshlrev_b32 {v(T0)}, 6, {v(T0)}')
    a(f'v_lshl_add_u32 {v(T0)}, {v(T1)}, 3, {v(T0)}')
    a('s_waitcnt lgkmcnt(0)')
    for jt in range(4):
        for r in range(4): a(f'v_add_f32 {v(BF0+4*jt+r)}, {v(BF0+4*jt+r)}, {v(YS+4*jt+r)}')
        a(f'v_cvt_pk_bf16_f32 {v(AF0+2*jt)}, {v(BF0+4*jt)}, {v(BF0+4*jt+1)}')
        a(f'v_cvt_pk_bf16_f32 {v(AF0+2*jt+1)}, {v(BF0+4*jt+2)}, {v(BF0+4*jt+3)}')
        a(f'buffer_store_dwordx2 {v(AF0+2*jt,2)}, {v(T0)}, s[4:7], s40 offen offset:{1024*jt}{SC()}')
    a('s_add_u32 s49, s49, 8')
    a('s_cmp_lt_u32 s49, s50')
    a(f's_cbranch_scc0 L_cdone')
    for r in range(16): a(f'v_mov_b32 {v(YS+r)}, {v(Y+r)}')
    a(f's_branch L_fin')
    a(f'L_cdone:')
```

```python
from common import *
from syncp import emit_flag, emit_poll
V_LANE=1; T0=2; T1=3; T2=4; T3=5; T4=6; T5=7
AF=120; XR=192; GR=198
AF8=16; BFR=88; ACC=104; YR=200+2; BX=216
def emit_ids(a):
    a('s_and_b32 s12, s2, 7')
    a('s_lshr_b32 s13, s2, 3')
    a('s_lshr_b32 s14, s13, 2')
    a('s_lshl_b32 s96, s12, 8')
    a('s_lshl_b32 s14, s14, 5')
    a('s_add_u32 s96, s96, s14')
    a('s_and_b32 s97, s13, 3')

def emit_prefetch(a):
    a(f'v_lshlrev_b32 {v(T0)}, 4, {v(V_LANE)}')
    a('s_mul_i32 s24, s97, 9')
    a('s_add_u32 s24, s24, s10')
    a('s_lshl_b32 s24, s24, 10')
    a(f's_add_u32 s24, s24, {WOF_OFF}')
    for k in range(18):
        a(f'buffer_load_dwordx4 {v(AF+4*k,4)}, {v(T0)}, s[4:7], s24 offen{SL()}')
        if k < 17: a(f's_add_u32 s24, s24, {36*1024}')
    srd(a, 44, P_X, 2048*1152)
    a(f'v_and_b32 {v(T0)}, 15, {v(V_LANE)}')
    a(f'v_lshrrev_b32 {v(T1)}, 4, {v(V_LANE)}')
    a(f'v_mul_u32_u24 {v(T2)}, 1152, {v(T0)}')
    a(f'v_lshl_add_u32 {v(T2)}, {v(T1)}, 3, {v(T2)}')
    a('s_mul_i32 s28, s96, 1152')
    a('s_mul_i32 s29, s97, 288')
    a('s_add_u32 s28, s28, s29')
    a('s_lshl_b32 s29, s10, 5')
    a('s_add_u32 s29, s29, s28')
    a(f'buffer_load_dwordx2 {v(XR,2)}, {v(T2)}, s[44:47], s29 offen')
    a(f's_add_u32 s29, s29, {16*1152}')
    a(f'buffer_load_dwordx2 {v(XR+2,2)}, {v(T2)}, s[44:47], s29 offen')
    a(f's_mul_i32 s29, s10, {16*1152}')
    a('s_add_u32 s29, s29, s28')
    a('s_add_u32 s29, s29, 256')
    a(f'buffer_load_dwordx2 {v(XR+4,2)}, {v(T2)}, s[44:47], s29 offen')

def emit_af8(a):
    a('s_cmp_lt_u32 s10, 2')
    a(f's_cbranch_scc0 L_no8')
    a(f'v_lshlrev_b32 {v(T5)}, 4, {v(V_LANE)}')
    a('s_mul_i32 s14, s97, 9')
    a('s_add_u32 s46, s14, 8')
    a('s_lshl_b32 s46, s46, 10')
    a(f's_add_u32 s46, s46, {WOF_OFF}')
    for k in range(18):
        a(f'buffer_load_dwordx4 {v(AF8+4*k,4)}, {v(T5)}, s[4:7], s46 offen{SL()}')
        if k < 17: a(f's_add_u32 s46, s46, {36*1024}')
    a(f'L_no8:')

def emit_main(a):
    srd(a, 20, P_OUT, 2048*1152)
    a(f'v_and_b32 {v(T0)}, 15, {v(V_LANE)}')
    a(f'v_lshrrev_b32 {v(T1)}, 4, {v(V_LANE)}')
    a(f'v_lshrrev_b32 {v(8)}, 1, {v(T1)}')
    a(f'v_lshlrev_b32 {v(8)}, 16, {v(8)}')
    a(f'v_lshl_add_u32 {v(8)}, {v(T0)}, 5, {v(8)}')
    a(f'v_and_b32 {v(9)}, 1, {v(T1)}')
    a(f'v_lshl_add_u32 {v(8)}, {v(9)}, 4, {v(8)}')
    a(f'v_lshlrev_b32 {v(9)}, 7, {v(T0)}')
    a(f'v_lshl_add_u32 {v(9)}, {v(T1)}, 4, {v(9)}')
    a('s_mov_b32 s36, s10')
    a(f'L_odma:')
    a('s_lshr_b32 s37, s36, 1')
    a('s_and_b32 s38, s36, 1')
    a('s_lshl_b32 m0, s36, 10')
    a('s_lshl_b32 s39, s38, 4')
    a('s_add_u32 s39, s39, s96')
    a('s_cmp_lt_u32 s37, 16')
    a(f's_cbranch_scc0 L_ohi')
    a('s_lshl_b32 s40, s37, 17')
    a('s_lshl_b32 s39, s39, 5')
    a('s_add_u32 s40, s40, s39')
    a(f's_add_u32 s40, s40, {OLO_OFF}')
    a(f'buffer_load_dwordx4 {v(8)}, s[4:7], s40 offen{SL()} lds')
    a(f's_branch L_onext')
    a(f'L_ohi:')
    a('s_sub_u32 s37, s37, 16')
    a('s_lshl_b32 s40, s37, 6')
    a('s_lshl_b32 s39, s39, 7')
    a('s_add_u32 s40, s40, s39')
    a(f's_add_u32 s40, s40, {OHI_OFF}')
    a(f'buffer_load_dwordx4 {v(9)}, s[4:7], s40 offen{SL()} lds')
    a(f'L_onext:')
    a('s_add_u32 s36, s36, 8')
    a('s_cmp_lt_u32 s36, 36')
    a(f's_cbranch_scc1 L_odma')
    a(f'v_lshlrev_b32 {v(T3)}, 14, {v(T1)}')
    a(f'v_and_b32 {v(T4)}, 14, {v(T0)}')
    a(f'v_lshl_add_u32 {v(T3)}, {v(T4)}, 1, {v(T3)}')
    a(f's_mul_i32 s33, s97, {144*4096}')
    a('s_lshl_b32 s34, s96, 1')
    a('s_add_u32 s33, s33, s34')
    a(f's_add_u32 s33, s33, {Y_OFF}')
    a('s_lshl_b32 s34, s10, 16')
    a('s_add_u32 s34, s34, s33')
    a('s_lshl_b32 s35, s10, 5')
    a('s_add_u32 s35, s35, s33')
    a(f's_add_u32 s35, s35, {8*16*4096}')
    for r in range(4):
        a(f's_add_u32 s36, s34, {r*4096}')
        a(f'buffer_load_dword {v(YR+r)}, {v(T3)}, s[4:7], s36 offen{SL()}')
        a(f'buffer_load_dword {v(YR+4+r)}, {v(T3)}, s[4:7], s36 offen offset:32{SL()}')
        a(f's_add_u32 s36, s35, {r*4096}')
        a(f'buffer_load_dword {v(YR+8+r)}, {v(T3)}, s[4:7], s36 offen{SL()}')
    a(f'v_lshlrev_b32 {v(T4)}, 2, {v(T0)}')
    a('s_lshl_b32 s36, s96, 2')
    a(f's_add_u32 s36, s36, {G_OFF}')
    a(f'buffer_load_dword {v(GR)}, {v(T4)}, s[4:7], s36 offen{SL()}')
    a(f'buffer_load_dword {v(GR+1)}, {v(T4)}, s[4:7], s36 offen offset:64{SL()}')
    a('s_mul_i32 s28, s96, 1152')
    a('s_mul_i32 s29, s97, 288')
    a('s_add_u32 s28, s28, s29')
    a('s_lshl_b32 s29, s10, 5')
    a('s_add_u32 s30, s28, s29')
    a(f's_add_u32 s31, s30, {16*1152}')
    a(f's_mul_i32 s32, s10, {16*1152}')
    a('s_add_u32 s32, s32, s28')
    a('s_add_u32 s32, s32, 256')
    for r in range(12): a(f'v_mov_b32 {v(ACC+r)}, 0')
    a(f'v_lshlrev_b32 {v(T5)}, 4, {v(V_LANE)}')
    a('s_lshl_b32 s36, s10, 10')
    a(f'v_add_u32 {v(11)}, s36, {v(T5)}')
    a('s_waitcnt vmcnt(0)')
    a('s_barrier')
    stamp(a, 'oarr')
    for ver in range(2):
        three = (ver == 1)
        if ver == 0:
            a('s_cmp_lt_u32 s10, 2')
            a('s_cbranch_scc1 L_o3')
        else:
            a('L_o3:')
        def rd(k):
            s = BFR + 8*(k % 2)
            a(f'ds_read_b128 {v(s,4)}, {v(T5)} offset:{(2*k)*1024}')
            a(f'ds_read_b128 {v(s+4,4)}, {v(T5)} offset:{(2*k+1)*1024}')
            if three: a(f'ds_read_b128 {v(BX+4*(k%2),4)}, {v(11)} offset:{(2*k)*1024}')
        per = 3 if three else 2
        rd(0)
        for k in range(18):
            if k+1 < 18: rd(k+1)
            a(f's_waitcnt lgkmcnt({per if k+1 < 18 else 0})')
            s = BFR + 8*(k % 2)
            a(f'v_mfma_f32_16x16x32_bf16 {v(ACC,4)}, {v(AF+4*k,4)}, {v(s,4)}, {v(ACC,4)}')
            a(f'v_mfma_f32_16x16x32_bf16 {v(ACC+4,4)}, {v(AF+4*k,4)}, {v(s+4,4)}, {v(ACC+4,4)}')
            if three: a(f'v_mfma_f32_16x16x32_bf16 {v(ACC+8,4)}, {v(AF8+4*k,4)}, {v(BX+4*(k%2),4)}, {v(ACC+8,4)}')
        if ver == 0: a('s_branch L_odonemm')
    a('L_odonemm:')
    a(f'v_mul_u32_u24 {v(T2)}, 1152, {v(T0)}')
    a(f'v_lshl_add_u32 {v(T2)}, {v(T1)}, 3, {v(T2)}')
    a('s_cmp_eq_u32 s10, 1')
    a('s_cselect_b64 vcc, -1, 0')
    a(f'v_cndmask_b32 {v(GR+2)}, {v(GR)}, {v(GR+1)}, vcc')
    a(f'v_and_b32 {v(9)}, 1, {v(T0)}')
    a(f'v_lshlrev_b32 {v(9)}, 4, {v(9)}')
    a('s_nop 3')
    for ti, soff in enumerate(('s30','s31','s32')):
        greg = GR + ti
        if ti == 2:
            a('s_cmp_lt_u32 s10, 2')
            a(f's_cbranch_scc0 L_odone')
        a(f'v_sub_f32 {v(15)}, 1.0, {v(greg)}')
        for r in range(4):
            xs = XR + 2*ti + (r >> 1)
            if r & 1: a(f'v_and_b32 {v(T3)}, 0xffff0000, {v(xs)}')
            else: a(f'v_lshlrev_b32 {v(T3)}, 16, {v(xs)}')
            a(f'v_lshrrev_b32 {v(T4)}, {v(9)}, {v(YR+4*ti+r)}')
            a(f'v_lshlrev_b32 {v(T4)}, 16, {v(T4)}')
            a(f'v_mul_f32 {v(T3)}, {v(T3)}, {v(T4)}')
            a(f'v_mul_f32 {v(T3)}, {v(T3)}, {v(15)}')
            a(f'v_fma_f32 {v(ACC+4*ti+r)}, {v(ACC+4*ti+r)}, {v(greg)}, {v(T3)}')
        d = 224 + 2*ti
        a(f'v_cvt_pk_bf16_f32 {v(d)}, {v(ACC+4*ti)}, {v(ACC+4*ti+1)}')
        a(f'v_cvt_pk_bf16_f32 {v(d+1)}, {v(ACC+4*ti+2)}, {v(ACC+4*ti+3)}')
        a(f'buffer_store_dwordx2 {v(d,2)}, {v(T2)}, s[20:23], {soff} offen')
    a(f'L_odone:')
```

```python
from common import *
from syncp import emit_flag, emit_poll
V_LANE=1; T0=2; T1=3; T2=4; T3=5; T4=6; T5=7
KL = 0
VL = 40960
XL = 40960+36864
def emit_aux(a):
    srd(a, 24, P_K, 2048*1152); srd(a, 28, P_V, 2048*1152); srd(a, 44, P_SHIFT, 576*8)
    srd(a, 48, P_X, 2048*1152); srd(a, 52, P_GATE, 1152)
    a(f'v_lshlrev_b32 {v(T0)}, 4, {v(V_LANE)}')
    a(f's_mul_i32 s36, s33, {32*1152}')
    a(f's_lshl_b32 s37, s10, 10')
    a(f's_add_u32 s38, s36, s37')
    a(f's_sub_u32 s39, s38, 3456')
    a(f'v_add_u32 {v(T1)}, s39, {v(T0)}')
    for m in range(5):
        a(f's_add_u32 m0, s37, {KL + 8192*m}')
        a('s_nop 0')
        a(f'buffer_load_dwordx4 {v(T1)}, s[24:27], 0 offen lds')
        if m < 4: a(f'v_add_u32 {v(T1)}, 8192, {v(T1)}')
    a(f'v_add_u32 {v(T1)}, s38, {v(T0)}')
    for m in range(5):
        if m == 4:
            a('s_cmp_lt_u32 s10, 4')
            a('s_cbranch_scc0 L_axd')
        a(f's_add_u32 m0, s37, {VL + 8192*m}')
        a('s_nop 0')
        a(f'buffer_load_dwordx4 {v(T1)}, s[28:31], 0 offen lds')
        a(f's_add_u32 m0, s37, {XL + 8192*m}')
        a('s_nop 0')
        a(f'buffer_load_dwordx4 {v(T1)}, s[48:51], 0 offen lds')
        if m < 4: a(f'v_add_u32 {v(T1)}, 8192, {v(T1)}')
    a('L_axd:')
    K0=32; V0=54; TP=70; TP2=78
    a(f'v_lshrrev_b32 {v(T1)}, 2, {v(V_LANE)}')
    a(f's_mul_i32 s38, s10, 9')
    a(f'v_add_u32 {v(T1)}, s38, {v(T1)}')
    a(f'v_and_b32 {v(T2)}, 3, {v(V_LANE)}')
    a(f'v_lshlrev_b32 {v(T4)}, 5, {v(T1)}')
    a(f'buffer_load_dwordx4 {v(TP,4)}, {v(T4)}, s[44:47], 0 offen')
    a(f'buffer_load_dwordx4 {v(TP+4,4)}, {v(T4)}, s[44:47], 0 offen offset:16')
    a(f'buffer_load_dwordx4 {v(TP2,4)}, {v(T4)}, s[44:47], 0 offen offset:2304')
    a(f'buffer_load_dwordx4 {v(TP2+4,4)}, {v(T4)}, s[44:47], 0 offen offset:2320')
    GX = 144; GW = 164
    a(f'v_and_b32 {v(10)}, 15, {v(V_LANE)}')
    a(f'v_lshrrev_b32 {v(11)}, 4, {v(V_LANE)}')
    a(f'v_lshlrev_b32 {v(14)}, 4, {v(10)}')
    for m in range(5):
        if m == 4:
            for i in range(4): a(f'v_mov_b32 {v(GW+16+i)}, 0')
            a(f'v_cmp_gt_u32 vcc, 8, {v(10)}')
            a('s_and_saveexec_b64 s[40:41], vcc')
        a(f'buffer_load_dwordx4 {v(GW+4*m,4)}, {v(14)}, s[52:55], 0 offen offset:{256*m}')
        if m == 4: a('s_mov_b64 exec, s[40:41]')
    stamp(a, 'x_issued')
    a(f'v_mul_u32_u24 {v(T3)}, {8*1152}, {v(T2)}')
    a(f'v_lshl_add_u32 {v(T3)}, {v(T1)}, 3, {v(T3)}')
    a(f'v_sub_u32 {v(T2)}, 3, {v(T2)}')
    a(f'v_lshlrev_b32 {v(T2)}, 4, {v(T2)}')
    a(f's_mul_i32 s38, s33, {4*9216}')
    a(f's_add_u32 s38, s38, {UR_OFF}')
    a('s_waitcnt vmcnt(0)')
    a('s_barrier')
    stamp(a, 'x_data')
    a('s_lshl_b32 s37, s10, 2')
    a(f'v_add_u32 {v(12)}, s37, {v(11)}')
    a(f'v_mul_u32_u24 {v(13)}, 1152, {v(12)}')
    a(f'v_lshl_add_u32 {v(13)}, {v(10)}, 4, {v(13)}')
    a(f'v_add_u32 {v(13)}, {XL}, {v(13)}')
    for m in range(4): a(f'ds_read_b128 {v(GX+4*m,4)}, {v(13)} offset:{256*m}')
    for i in range(4): a(f'v_mov_b32 {v(GX+16+i)}, 0')
    a(f'v_cmp_gt_u32 vcc, 8, {v(10)}')
    a('s_and_saveexec_b64 s[40:41], vcc')
    a(f'ds_read_b128 {v(GX+16,4)}, {v(13)} offset:1024')
    a('s_mov_b64 exec, s[40:41]')
    a(f'v_cmp_gt_u32 vcc, 36, {v(V_LANE)}')
    a(f's_and_saveexec_b64 s[40:41], vcc')
    a('s_mov_b32 s37, 0')
    a('L_prep_rnd:')
    for r in range(11): a(f'ds_read_b64 {v(K0+2*r,2)}, {v(T3)} offset:{KL+r*1152}')
    a('s_waitcnt lgkmcnt(4)')
    for r in range(8): a(f'ds_read_b64 {v(V0+2*r,2)}, {v(T3)} offset:{VL+r*1152}')
    a(f'v_cmp_le_u32 vcc, 36, {v(T1)}')
    a(f'v_subrev_u32 {v(T5)}, 36, {v(T1)}')
    a(f'v_mov_b32 {v(T0)}, 9216')
    a(f'v_cndmask_b32 {v(T5)}, {v(T1)}, {v(T5)}, vcc')
    a(f'v_cndmask_b32 {v(T0)}, 0, {v(T0)}, vcc')
    a(f'v_lshl_add_u32 {v(T5)}, {v(T5)}, 8, {v(T0)}')
    a(f'v_add_u32 {v(T5)}, {v(T5)}, {v(T2)}')
    a('s_waitcnt lgkmcnt(0)')
    W=184; KF=192; O=214
    for d in range(2):
        for j in range(4):
            for c in range(2):
                src = TP + 4*d + 2*c + (j >> 1)
                if j & 1: a(f'v_and_b32 {v(W+2*j+c)}, 0xffff0000, {v(src)}')
                else: a(f'v_lshlrev_b32 {v(W+2*j+c)}, 16, {v(src)}')
        for r in range(11):
            a(f'v_lshlrev_b32 {v(KF+2*r)}, 16, {v(K0+2*r+d)}')
            a(f'v_and_b32 {v(KF+2*r+1)}, 0xffff0000, {v(K0+2*r+d)}')
        for t in range(8):
            a(f'v_pk_mul_f32 {v(O+2*t,2)}, {v(W,2)}, {v(KF+2*(t+3),2)}')
            for j in range(1,4): a(f'v_pk_fma_f32 {v(O+2*t,2)}, {v(W+2*j,2)}, {v(KF+2*(t+3-j),2)}, {v(O+2*t,2)}')
        for t in range(8):
            a(f'v_lshlrev_b32 {v(KF+2*t)}, 16, {v(V0+2*t+d)}')
            a(f'v_and_b32 {v(KF+2*t+1)}, 0xffff0000, {v(V0+2*t+d)}')
        for t in range(8): a(f'v_pk_mul_f32 {v(O+2*t,2)}, {v(O+2*t,2)}, {v(KF+2*t,2)}')
        for c in range(2):
            dst = 232 + 4*c
            for p in range(4): a(f'v_cvt_pk_bf16_f32 {v(dst+p)}, {v(O+2*(7-2*p)+c)}, {v(O+2*(6-2*p)+c)}')
            a(f'buffer_store_dwordx4 {v(dst,4)}, {v(T5)}, s[4:7], s38 offen offset:{(2*d+c)*64}{SC()}')
        if d == 0: a('s_nop 1')
    a('s_cmp_eq_u32 s37, 1')
    a('s_cbranch_scc1 L_prep_done')
    for r in range(8): a(f'v_mov_b32 {v(TP+r)}, {v(TP2+r)}')
    a(f'v_add_u32 {v(T3)}, 576, {v(T3)}')
    a(f's_add_u32 s38, s38, {2*9216}')
    a('s_mov_b32 s37, 1')
    a('s_branch L_prep_rnd')
    a('L_prep_done:')
    a(f's_mov_b64 exec, s[40:41]')
    G = 15
    a(f'v_mov_b32 {v(G)}, 0')
    for i in range(20): a(f'v_dot2_f32_bf16 {v(G)}, {v(GX+i)}, {v(GW+i)}, {v(G)}')
    a('s_nop 3')
    for sh in (8,4,2,1):
        a('s_nop 1')
        a(f'v_add_f32_dpp {v(G)}, {v(G)}, {v(G)} row_ror:{sh} row_mask:0xf bank_mask:0xf')
    a(f'v_mul_f32 {v(G)}, 0xbfb8aa3b, {v(G)}')
    a(f'v_exp_f32 {v(G)}, {v(G)}')
    a('s_lshl_b32 s36, s33, 5')
    a(f'v_add_f32 {v(G)}, 1.0, {v(G)}')
    a(f'v_rcp_f32 {v(G)}, {v(G)}')
    a(f'v_add_u32 {v(12)}, s36, {v(12)}')
    a(f'v_lshlrev_b32 {v(12)}, 2, {v(12)}')
    a(f's_mov_b32 s36, {G_OFF}')
    a(f'v_cmp_eq_u32 vcc, 0, {v(10)}')
    a('s_and_saveexec_b64 s[40:41], vcc')
    a(f'buffer_store_dword {v(G)}, {v(12)}, s[4:7], s36 offen{SC()}')
    a('s_mov_b64 exec, s[40:41]')
    a('s_waitcnt vmcnt(0)')
    a('s_barrier')
    a('s_lshl_b32 s14, s33, 2')
    a(f's_add_u32 s14, s14, {F0_OFF}')
    emit_flag(a, 's14', 32, 256)
    stamp(a, 'x_f0')

def emit_wof(a):
    srd(a, 44, P_WO, 576*1152)
    R = 144
    a(f'v_and_b32 {v(T0)}, 15, {v(V_LANE)}')
    a(f'v_lshrrev_b32 {v(T1)}, 4, {v(V_LANE)}')
    a(f'v_lshrrev_b32 {v(T2)}, 1, {v(T1)}')
    a(f'v_mul_u32_u24 {v(T2)}, 20, {v(T2)}')
    a(f'v_and_b32 {v(T3)}, 1, {v(T1)}')
    a(f'v_lshl_add_u32 {v(T2)}, {v(T3)}, 3, {v(T2)}')
    a(f'v_mul_u32_u24 {v(T3)}, 72, {v(T1)}')
    a(f'v_lshlrev_b32 {v(T5)}, 4, {v(V_LANE)}')
    lo = [0,1,2,3,4,5,6,7]; hi = [16,17,18,19,52,53,54,55]
    for rnd in range(2):
        a('s_lshl_b32 s16, s10, 6')
        a('s_add_u32 s16, s16, s33')
        if rnd: a('s_add_u32 s16, s16, 512')
        a(f's_lshl_b32 s{20+rnd}, s16, 10')
        a(f's_add_u32 s{20+rnd}, s{20+rnd}, {WOF_OFF}')
        a('s_cmp_ge_u32 s16, 648')
        a(f's_cselect_b32 s{20+rnd}, 0x7f000000, s{20+rnd}')
        a('s_min_u32 s16, s16, 647')
        a('s_mul_i32 s15, s16, 1821')
        a('s_lshr_b32 s15, s15, 16')
        a('s_mul_i32 s17, s15, 36')
        a('s_sub_u32 s16, s16, s17')
        a('s_sub_u32 s18, s15, 16')
        a('s_mul_i32 s18, s18, 288')
        a('s_cmp_lt_u32 s15, 16')
        a('s_cselect_b64 vcc, -1, 0')
        a('s_cselect_b32 s17, s17, s18')
        a(f'v_cndmask_b32 {v(T4)}, {v(T3)}, {v(T2)}, vcc')
        a(f'v_add_u32 {v(T4)}, s17, {v(T4)}')
        a(f'v_mul_u32_u24 {v(T4)}, 1152, {v(T4)}')
        a(f's_lshl_b32 s16, s16, 5')
        a(f'v_lshl_add_u32 {v(T4)}, {v(T0)}, 1, {v(T4)}')
        a(f'v_add_u32 {v(T4)}, s16, {v(T4)}')
        a('s_cmp_lt_u32 s15, 16')
        for j in range(8):
            a(f's_movk_i32 s19, {lo[j]*1152}')
            a(f's_cselect_b32 s18, s19, {hi[j]*1152}')
            a(f'buffer_load_ushort {v(R+8*rnd+j)}, {v(T4)}, s[44:47], s18 offen')
    a('s_waitcnt vmcnt(0)')
    for rnd in range(2):
        for p in range(4): a(f'v_lshl_or_b32 {v(160+4*rnd+p)}, {v(R+8*rnd+2*p+1)}, 16, {v(R+8*rnd+2*p)}')
        a(f'buffer_store_dwordx4 {v(160+4*rnd,4)}, {v(T5)}, s[4:7], s{20+rnd} offen{SC()}')
```

```python
from asmb import *
from layout import *
TIMEOUT = 20000
_n = [0]
def emit_flag(a, off_expr_sreg, R=1, stride=0):
    _n[0] += 1
    lab = f'L_flag{_n[0]}'
    a('s_cmp_eq_u32 s10, 0')
    a(f's_cbranch_scc0 {lab}')
    a('v_mov_b32 v2, s3')
    if R > 1: a(f'v_mul_u32_u24 v3, {stride}, v1')
    else: a('v_mov_b32 v3, 0')
    a('s_mov_b64 s[40:41], exec')
    a(f's_mov_b32 exec_lo, {hex((1<<R)-1)}')
    a('s_mov_b32 exec_hi, 0')
    a(f'buffer_store_dword v2, v3, s[4:7], {off_expr_sreg} offen sc1')
    a('s_mov_b64 exec, s[40:41]')
    a(f'{lab}:')
def emit_poll(a, off_sreg, nlanes, wide=1, wave=0):
    _n[0] += 1
    lab = f'L_poll{_n[0]}'
    if wave is not None:
        a(f's_cmp_eq_u32 s10, {wave}')
        a(f's_cbranch_scc0 {lab}_e')
    a(f'v_lshlrev_b32 v2, {2 if wide==1 else 4}, v1')
    a('s_mov_b64 s[40:41], exec')
    if nlanes < 64:
        if nlanes <= 32: a(f's_mov_b32 exec_lo, {hex((1<<nlanes)-1)}\ns_mov_b32 exec_hi, 0')
        else: a(f's_mov_b32 exec_lo, -1\ns_mov_b32 exec_hi, {hex((1<<(nlanes-32))-1)}')
    a(f's_mov_b32 s42, {TIMEOUT}')
    a(f'{lab}:')
    if wide == 1:
        a(f'buffer_load_dword v4, v2, s[4:7], {off_sreg} offen sc1')
        a('s_waitcnt vmcnt(0)')
        a('v_cmp_ne_u32 vcc, s3, v4')
    else:
        a(f'buffer_load_dwordx4 v[4:7], v2, s[4:7], {off_sreg} offen sc1')
        a('s_waitcnt vmcnt(0)')
        a('v_xor_b32 v4, s3, v4\nv_xor_b32 v5, s3, v5\nv_xor_b32 v6, s3, v6\nv_xor_b32 v7, s3, v7')
        a('v_or3_b32 v4, v4, v5, v6\nv_or_b32 v4, v4, v7')
        a('v_cmp_ne_u32 vcc, 0, v4')
    a('s_nop 3')
    a('s_cmp_eq_u64 vcc, 0')
    a(f's_cbranch_scc1 {lab}_d')
    a('s_sub_u32 s42, s42, 1')
    a('s_cmp_lg_u32 s42, 0')
    a(f's_cbranch_scc1 {lab}')
    a(f'{lab}_d:')
    a('s_mov_b64 exec, s[40:41]')
    a(f'{lab}_e:')
```

```python
import sys, json
from common import *
from syncp import emit_flag, emit_poll
import phA, phB, phC, phD, phX
NAME = 'gated_mix__mha_block__ssm_conv_h3__prompt_kernel'
def build(stamp_on=False):
    ctx.stamp = stamp_on
    a = Asm()
    a(f'.globl {NAME}\n.p2align 8\n.type {NAME},@function\n{NAME}:')
    a('s_cmp_ge_u32 s2, 256')
    a('s_cbranch_scc1 L_end')
    a('s_load_dwordx16 s[64:79], s[0:1], 0')
    a('s_load_dwordx8 s[80:87], s[0:1], 64')
    a('s_load_dwordx2 s[88:89], s[0:1], 96')
    a('s_getpc_b64 s[90:91]')
    a('L_pcbase:')
    a('v_lshrrev_b32 v2, 6, v0')
    a('v_and_b32 v1, 63, v0')
    a('v_readfirstlane_b32 s10, v2')
    if stamp_on:
        a('v_mov_b32 v255, 0')
        stamp_rt(a, 62)
        stamp(a, 'start')
    a('v_lshlrev_b32 v2, 7, v0')
    a('v_cmp_gt_u32 vcc, L_end-L_pcbase, v2')
    a('s_and_saveexec_b64 s[92:93], vcc')
    a('s_cbranch_execz L_nocp')
    a('global_load_dword v253, v2, s[90:91]')
    a('L_nocp:')
    a('s_mov_b64 exec, s[92:93]')
    phA.emit_roles(a)
    phB.emit_phB_ids(a)
    phD.emit_ids(a)
    a('s_and_b32 s12, s2, 7')
    a('s_lshr_b32 s13, s2, 3')
    a('s_waitcnt lgkmcnt(0)')
    srd(a, 4, P_WS, WS_END)
    a('v_mov_b32 v2, 0')
    a(f's_mov_b32 s14, {EPOCH_OFF}')
    a('buffer_load_dword v254, v2, s[4:7], s14 offen sc1')
    def nonce(a):
        a('v_readfirstlane_b32 s3, v254')
        a('s_mul_i32 s3, s3, 0x0019660d')
        a('s_add_u32 s3, s3, 0x3c6ef35f')
    a('s_cmp_eq_u32 s32, 1')
    a('s_cbranch_scc1 L_aux')
    a('s_cmp_ge_u32 s10, 4')
    a('s_cbranch_scc1 L_prod')
    def pre_loop(a):
        a('s_waitcnt vmcnt(0)')
        nonce(a)
    phA.emit_gemm_consumer(a, pre_loop)
    a('s_branch L_afterA')
    a('L_prod:')
    phA.emit_gemm_producer(a)
    nonce(a)
    a('s_branch L_afterA')
    a('L_aux:')
    a('s_waitcnt vmcnt(0)')
    nonce(a)
    phX.emit_aux(a)
    a('L_afterA:')
    phC.emit_stage(a)
    a('s_waitcnt vmcnt(0) lgkmcnt(0)')
    a('s_barrier')
    stamp(a, 'staged')
    a('s_cmp_eq_u32 s32, 1')
    a('s_cbranch_scc1 L_nof1')
    a('s_lshl_b32 s14, s9, 8')
    a('s_lshl_b32 s15, s11, 6')
    a('s_add_u32 s14, s14, s15')
    a('s_lshl_b32 s15, s8, 2')
    a('s_add_u32 s14, s14, s15')
    a(f's_add_u32 s14, s14, {F1_OFF}')
    emit_flag(a, 's14', 4, 1024)
    a('L_nof1:')
    phC.emit_conv(a, phB.emit_mid)
    a('s_barrier')
    stamp(a, 'convend')
    def after_bar(a):
        a('s_lshl_b32 s14, s2, 2')
        a(f's_add_u32 s14, s14, {F2_OFF}')
        emit_flag(a, 's14', 8, 1024)
    phB.emit_phB(a, phD.emit_prefetch, after_bar)
    stamp(a, 'attnend')
    a('s_waitcnt vmcnt(0)')
    a('s_barrier')
    a('s_lshl_b32 s14, s61, 7')
    a('s_lshl_b32 s15, s60, 2')
    a('s_add_u32 s14, s14, s15')
    a(f's_add_u32 s14, s14, {F3_OFF}')
    emit_flag(a, 's14', 4, 1024)
    phD.emit_af8(a)
    a('s_and_b32 s14, s2, 7')
    a('s_lshl_b32 s14, s14, 7')
    a('s_bfe_u32 s15, s2, 0x20003')
    a('s_lshl_b32 s15, s15, 10')
    a('s_add_u32 s14, s14, s15')
    a(f's_add_u32 s14, s14, {F3_OFF}')
    emit_poll(a, 's14', 32, wave=7)
    a('s_and_b32 s14, s2, 7')
    a('s_lshl_b32 s14, s14, 10')
    a(f's_add_u32 s14, s14, {F2_OFF}')
    emit_poll(a, 's14', 64, wide=4, wave=6)
    a('s_barrier')
    stamp(a, 'f3wait')
    phD.emit_main(a)
    a('s_cmp_eq_u32 s2, 0')
    a('s_cbranch_scc0 L_noep')
    a(f's_mov_b32 s14, {EPOCH_OFF}')
    emit_flag(a, 's14')
    a('L_noep:')
    if stamp_on:
        a('s_waitcnt vmcnt(0)')
        stamp(a, 'end')
        stamp_rt(a, 63)
        stamp_dump(a)
    a('s_branch L_end')
    phB.emit_phB_fallback(a)
    a('L_end:')
    a('s_endpgm')
    txt = HEADER + f'; @launch grid=(256,1,1) block=(512,1,1) lds=163840\n'
    txt += '.amdgcn_target "amdgcn-amd-amdhsa--gfx950"\n.text\n' + a.text()
    txt += '.section .rodata,"a"\n' + kd(NAME, 256, sgpr=102)
    return txt
if __name__ == '__main__':
    ctx.sl = 'sl' in sys.argv
    for o in sys.argv[2:]:
        if o.startswith('thr='): phB.THRESH = int(o[4:], 16)
        if o.startswith('prio='): phB.PRIO = int(o[5:])
    txt = build(stamp_on=('stamp' in sys.argv[2:]))
    txt = txt.replace('; @launch', '; STAMPS ' + json.dumps(STAMPS) + '\n; @launch', 1)
    open(sys.argv[1], 'w').write(txt)
```
